```python
import torch

def _softmax(x, axis=-1):
    return torch.softmax(x, dim=axis)
def _gelu(x):
    return torch.nn.functional.gelu(x, approximate="tanh")
def _silu(x):
    return torch.nn.functional.silu(x)
def _sigmoid(x):
    return torch.sigmoid(x)
def _layernorm(x, axis=-1, eps=1e-5):
    m = x.mean(dim=axis, keepdim=True)
    v = x.var(dim=axis, keepdim=True, unbiased=False)
    return (x - m) / torch.sqrt(v + eps)
def _scatter_add(tgt, idx, src, axis=0):
    return tgt.clone().index_add_(axis, idx, src)
def _segment_sum(src, seg, n):
    out = torch.zeros((n,) + src.shape[1:], dtype=src.dtype)
    return out.index_add_(0, seg, src)
def _pad(x, pw):
    flat = tuple(v for pair in reversed(pw) for v in pair)
    return torch.nn.functional.pad(x, flat)

kernel_name = 'concat_heads__sliding_local_dilated__mha_block__prompt'

def setup_inputs():

    _w = (lambda a: (lambda t: t.to(torch.bfloat16) if t.is_floating_point() else t)(torch.as_tensor(a)))
    def _A_setup():
        B, S, D = 1, 2048, 640
        return {
            "x": _w((lambda *s: torch.randn(*s, dtype=torch.bfloat16) * 0.4)(B, S, D)),
            "wqkv": _w((lambda *s: torch.randn(*s, dtype=torch.bfloat16) * 0.4)(D, 3 * D)),
            "wo": _w((lambda *s: torch.randn(*s, dtype=torch.bfloat16) * 0.05)(D, D)),
        }
    _A_in = _A_setup()

    def _B_setup():
        B, S, D, H = 1, 2048, 640, 32
        return {
            "x": _w((lambda *s: torch.randn(*s, dtype=torch.bfloat16) * 0.2)(B, S, D)),
            "wqkv": _w((lambda *s: torch.randn(*s, dtype=torch.bfloat16) * 0.4)(D, 3 * D)),
            "wo": _w((lambda *s: torch.randn(*s, dtype=torch.bfloat16) * 0.1)(D, D)),
        }
    _B_in = _B_setup()

    return {
        "A_x": _A_in["x"],
        "A_wqkv": _A_in["wqkv"],
        "A_wo": _A_in["wo"],
        "B_x": _B_in["x"],
        "B_wqkv": _B_in["wqkv"],
        "B_wo": _B_in["wo"],
    }

def reference(A_x, A_wqkv, A_wo, B_x, B_wqkv, B_wo):
    def _A_ref(x, wqkv, wo):
        B, S, D = x.shape
        H = 32; Dh = D // H
        W, dil = 8, 2
        qkv = (lambda x, *d: x.permute(*d))((x @ wqkv).reshape(B, S, 3, H, Dh), 2, 0, 3, 1, 4)
        q, k, v = qkv[0], qkv[1], qkv[2]
        scale = Dh ** -0.5
        pos = torch.arange(S)
        off = torch.arange(W) * dil
        idx = pos[:, None] - off[None, :]
        mask = idx >= 0
        idx_c = torch.where(mask, idx, 0).reshape(-1)
        kg = k[:, :, idx_c, :].reshape(B, H, S, W, Dh)
        vg = v[:, :, idx_c, :].reshape(B, H, S, W, Dh)
        logits = torch.einsum("bhsd,bhswd->bhsw", q, kg) * scale
        logits = torch.where(mask[None, None, :, :], logits, -1e9)
        attn = _softmax(logits, axis=-1)
        o = torch.einsum("bhsw,bhswd->bhsd", attn, vg)
        return (lambda x, *d: x.permute(*d))(o, 0, 2, 1, 3).reshape(B, S, D) @ wo

    def _B_ref(x, wqkv, wo):
        B, S, D = x.shape
        H = 32
        Dh = D // H
        qkv = (lambda x, *d: x.permute(*d))((x @ wqkv).reshape(B, S, 3, H, Dh), 2, 0, 3, 1, 4)
        q, k, v = qkv[0], qkv[1], qkv[2]
        scores = torch.einsum("bhqd,bhkd->bhqk", q, k) * (Dh ** -0.5)
        p = _softmax(scores, axis=-1)
        o = torch.einsum("bhqk,bhkd->bhqd", p, v)
        return (lambda x, *d: x.permute(*d))(o, 0, 2, 1, 3).reshape(B, S, D) @ wo

    a = _A_ref(A_x, A_wqkv, A_wo)
    b = _B_ref(B_x, B_wqkv, B_wo)
    return torch.concatenate([a, b], axis=-1)
```

```python
from common import *
import struct, math

def f32bits(x):
    return struct.unpack('<I', struct.pack('<f', x))[0]

def gen_local(a):
    name = "local_kernel"
    kernel_header(a, name)
    a("s_cmp_ge_u32 s2, 256")
    a("s_cbranch_scc1 %s_done", name)
    a("s_load_dwordx2 s[4:5], s[0:1], 64")
    a("v_and_b32 v1, 31, v0")
    a("v_lshrrev_b32 v2, 5, v0")
    a("s_lshl_b32 s3, s2, 3")
    a("v_add_u32 v2, s3, v2")
    a("v_mul_u32_u24 v1, 40, v1")
    a("s_waitcnt lgkmcnt(0)")
    a("s_mov_b32 s8, s4")
    a("s_mov_b32 s9, s5")
    a("s_mov_b32 s10, %d", 2048 * 3840)
    a("s_mov_b32 s11, 0x00020000")
    a("s_add_u32 s12, s4, %d", WS_OA)
    a("s_addc_u32 s13, s5, 0")
    a("s_mov_b32 s14, %d", 2048 * 1280)
    a("s_mov_b32 s15, 0x00020000")
    a("s_mov_b32 s16, 3840")
    Q, K, V = 16, 26, 106
    a("v_mad_u32_u24 v3, v2, s16, v1")
    for i in range(5):
        a("buffer_load_dwordx2 %s, v3, s[8:11], 0 offen offset:%d", vr(Q + 2 * i, 2), 8 * i)
    for w in range(8):
        a("v_subrev_u32 v4, %d, v2", 2 * w)
        a("v_max_i32 v4, 0, v4")
        a("v_mad_u32_u24 v%d, v4, s16, v1", 5 + w)
    for w in range(8):
        for i in range(5):
            a("buffer_load_dwordx2 %s, v%d, s[8:11], 0 offen offset:%d", vr(K + 10 * w + 2 * i, 2), 5 + w, 1280 + 8 * i)
    for w in range(8):
        for i in range(5):
            a("buffer_load_dwordx2 %s, v%d, s[8:11], 0 offen offset:%d", vr(V + 10 * w + 2 * i, 2), 5 + w, 2560 + 8 * i)
    L = 186
    a("s_waitcnt vmcnt(40)")
    for w in range(8):
        a("v_mov_b32 v%d, 0", L + w)
    for i in range(10):
        for w in range(8):
            a("v_dot2_f32_bf16 v%d, v%d, v%d, v%d", L + w, Q + i, K + 10 * w + i, L + w)
    a("s_nop 3")
    sc = (20.0 ** -0.5) * math.log2(math.e)
    a("s_mov_b32 s17, 0x%08x", f32bits(sc))
    a("v_mov_b32 v13, 0x%08x", f32bits(-1e30))
    for w in range(8):
        a("v_mul_f32 v%d, s17, v%d", L + w, L + w)
    for w in range(1, 8):
        a("v_cmp_le_u32 vcc, %d, v2", 2 * w)
        a("s_nop 1")
        a("v_cndmask_b32 v%d, v13, v%d, vcc", L + w, L + w)
    a("v_max3_f32 v14, v%d, v%d, v%d", L, L + 1, L + 2)
    a("v_max3_f32 v14, v14, v%d, v%d", L + 3, L + 4)
    a("v_max3_f32 v14, v14, v%d, v%d", L + 5, L + 6)
    a("v_max_f32 v14, v14, v%d", L + 7)
    for w in range(8):
        a("v_sub_f32 v%d, v%d, v14", L + w, L + w)
    for w in range(8):
        a("v_exp_f32 v%d, v%d", L + w, L + w)
    a("s_nop 0")
    a("v_add_f32 v15, v%d, v%d", L, L + 1)
    for w in range(2, 8):
        a("v_add_f32 v15, v15, v%d", L + w)
    a("v_rcp_f32 v15, v15")
    a("s_nop 0")
    for w in range(8):
        a("v_mul_f32 v%d, v%d, v15", L + w, L + w)
    O = 196
    for d in range(20):
        a("v_mov_b32 v%d, 0", O + d)
    a("s_waitcnt vmcnt(0)")
    for w in range(8):
        for i in range(10):
            src = V + 10 * w + i
            a("v_lshlrev_b32 v4, 16, v%d", src)
            a("v_and_b32 v5, 0xffff0000, v%d", src)
            a("v_fmac_f32 v%d, v%d, v4", O + 2 * i, L + w)
            a("v_fmac_f32 v%d, v%d, v5", O + 2 * i + 1, L + w)
    for i in range(10):
        a("v_cvt_pk_bf16_f32 v%d, v%d, v%d", Q + i, O + 2 * i, O + 2 * i + 1)
    a("s_mov_b32 s16, 1280")
    a("v_mad_u32_u24 v3, v2, s16, v1")
    for i in range(5):
        a("buffer_store_dwordx2 %s, v3, s[12:15], 0 offen offset:%d", vr(Q + 2 * i, 2), 8 * i)
    a.label("%s_done" % name)
    a("s_endpgm")
    return name, 216, 0, 256

STG = 24576
THRESH = 10.0

def gen_attn(a):
    name = "attn_kernel"
    kernel_header(a, name)
    SKV, SQ, SO = 8, 12, 16
    sWAVE, sWQ, sKH, sHEAD, sQB = 20, 21, 22, 23, 24
    sSTG = 25
    sDST = 26
    sSOFF = 27
    sCNT = 28
    sTH = 29
    sT0, sT1 = 30, 31
    vDMA = 2
    vK1, vK2, vV = 3, 4, 5
    cK1, cK2, cV = 6, 7, 8
    nK1, nK2 = 9, 10
    vT0, vT1, vT2 = 11, 12, 13
    QF = 16
    KF = 32
    VF = 40
    NM = 48
    OO = 80
    SS = 112
    VEND = 176
    def qf(qt, step): return QF + (qt * 2 + step) * 4
    def nm(qt): return NM + 16 * qt
    def oo(qt): return OO + 16 * qt
    def ss(qt, buf): return SS + (qt * 2 + buf) * 16

    a("s_cmp_ge_u32 s2, 256")
    a("s_cbranch_scc1 %s_done", name)
    a("s_load_dwordx2 s[4:5], s[0:1], 64")
    a("v_lshrrev_b32 v1, 6, v0")
    a("v_and_b32 v0, 63, v0")
    a("s_and_b32 s%d, s2, 7", sT0)
    a("v_readfirstlane_b32 s%d, v1", sWAVE)
    a("s_lshr_b32 s%d, s2, 3", sT1)
    a("s_lshl_b32 s%d, s%d, 2", sHEAD, sT0)
    a("s_lshr_b32 s%d, s%d, 3", sT0, sT1)
    a("s_add_u32 s%d, s%d, s%d", sHEAD, sHEAD, sT0)
    a("s_and_b32 s%d, s%d, 7", sQB, sT1)
    a("s_and_b32 s%d, s%d, 3", sWQ, sWAVE)
    a("s_lshr_b32 s%d, s%d, 2", sKH, sWAVE)
    a("s_mov_b32 s%d, 0x%08x", sTH, f32bits(THRESH))
    a("s_waitcnt lgkmcnt(0)")
    a("s_mul_i32 s%d, s%d, %d", sT0, sHEAD, 64 * 3072)
    a("s_add_u32 s%d, s%d, %d", sT0, sT0, WS_KV)
    a("s_add_u32 s%d, s4, s%d", SKV, sT0)
    a("s_addc_u32 s%d, s5, 0", SKV + 1)
    a("s_mov_b32 s%d, %d", SKV + 2, 64 * 3072)
    a("s_mov_b32 s%d, 0x00020000", SKV + 3)
    a("s_lshl_b32 s%d, s%d, 17", sT0, sHEAD)
    a("s_add_u32 s%d, s%d, %d", sT0, sT0, WS_QB)
    a("s_add_u32 s%d, s4, s%d", SQ, sT0)
    a("s_addc_u32 s%d, s5, 0", SQ + 1)
    a("s_mov_b32 s%d, %d", SQ + 2, 131072)
    a("s_mov_b32 s%d, 0x00020000", SQ + 3)
    a("s_add_u32 s%d, s4, %d", SO, WS_OB)
    a("s_addc_u32 s%d, s5, 0", SO + 1)
    a("s_mov_b32 s%d, %d", SO + 2, 2048 * 1280)
    a("s_mov_b32 s%d, 0x00020000", SO + 3)
    a("v_and_b32 v%d, 31, v0", vT0)
    a("v_lshrrev_b32 v%d, 5, v0", vT1)
    a("s_lshl_b32 s%d, s%d, 8", sT0, sQB)
    a("s_lshl_b32 s%d, s%d, 6", sT1, sWQ)
    a("s_add_u32 s%d, s%d, s%d", sT0, sT0, sT1)
    a("v_add_u32 v%d, s%d, v%d", vT2, sT0, vT0)
    a("v_lshlrev_b32 v%d, 6, v%d", vT2, vT2)
    a("v_lshl_add_u32 v14, v%d, 4, v%d", vT1, vT2)
    for qt in range(2):
        a("buffer_load_dwordx4 %s, v14, %s, 0 offen offset:%d", vr(qf(qt, 0), 4), sr(SQ, 4), qt * 2048)
        a("buffer_load_dwordx2 %s, v%d, %s, 0 offen offset:%d", vr(qf(qt, 1), 2), vT2, sr(SQ, 4), qt * 2048 + 32)
    a("s_mul_i32 s%d, s%d, 98304", sT0, sKH)
    a("s_mul_i32 s%d, s%d, 3072", sT1, sWQ)
    a("s_add_u32 s%d, s%d, s%d", sT0, sT0, sT1)
    a("v_lshlrev_b32 v%d, 4, v0", vDMA)
    a("v_add_u32 v%d, s%d, v%d", vDMA, sT0, vDMA)
    a("s_mul_i32 s%d, s%d, 12288", sDST, sKH)
    a("s_add_u32 s%d, s%d, s%d", sDST, sDST, sT1)
    sDST0 = 32
    a("s_mov_b32 s%d, s%d", sDST0, sDST)
    def dma(stage_lds_off_reg=None, imm_lds=None, soff_imm=None):
        pass
    for g in range(2):
        for j in range(3):
            a("s_add_u32 m0, s%d, %d", sDST0, g * STG + j * 1024)
            a("s_mov_b32 s%d, %d", sT0, g * 12288 + j * 1024)
            a("buffer_load_dwordx4 v%d, %s, s%d offen lds", vDMA, sr(SKV, 4), sT0)
    a("s_mul_i32 s%d, s%d, 12288", sT0, sKH)
    a("v_lshlrev_b32 v%d, 4, v0", vK1)
    a("v_add_u32 v%d, s%d, v%d", vK1, sT0, vK1)
    a("v_lshlrev_b32 v%d, 4, v%d", vK2, vT0)
    a("v_add_u32 v%d, s%d, v%d", vK2, sT0, vK2)
    a("v_add_u32 v%d, 1024, v%d", vK2, vK2)
    a("v_min_u32 v%d, 23, v%d", vV, vT0)
    a("v_lshlrev_b32 v%d, 4, v%d", vV, vV)
    a("v_mul_u32_u24 v14, 384, v%d", vT1)
    a("v_add_u32 v%d, v%d, v14", vV, vV)
    a("v_add_u32 v%d, s%d, v%d", vV, sT0, vV)
    a("v_add_u32 v%d, 1536, v%d", vV, vV)
    for r in range(32):
        a("v_mov_b32 v%d, 0", OO + r)
    a("s_waitcnt vmcnt(6)")
    a("v_cmp_gt_u32 vcc, 32, v0")
    a("s_nop 1")
    for qt in range(2):
        b = qf(qt, 1)
        a("v_cndmask_b32 v%d, 0, v%d, vcc", b, b)
        a("v_cndmask_b32 v%d, 0, v%d, vcc", b + 1, b + 1)
        a("v_mov_b32 v%d, 0", b + 2)
        a("v_mov_b32 v%d, 0", b + 3)
    a("s_waitcnt vmcnt(3)")
    a("s_barrier")
    a("ds_read_b128 %s, v%d", vr(KF, 4), vK1)
    a("ds_read_b128 %s, v%d", vr(KF + 4, 4), vK2)
    a("s_waitcnt lgkmcnt(0)")
    for qt in range(2):
        d = vr(ss(qt, 0), 16)
        a("v_mfma_f32_32x32x16_bf16 %s, %s, %s, %s", d, vr(KF, 4), vr(qf(qt, 0), 4), vr(oo(qt), 16))
        a("v_mfma_f32_32x32x16_bf16 %s, %s, %s, %s", d, vr(KF + 4, 4), vr(qf(qt, 1), 4), d)
    a("ds_read_b128 %s, v%d offset:3072", vr(KF, 4), vK1)
    a("ds_read_b128 %s, v%d offset:3072", vr(KF + 4, 4), vK2)
    a("s_nop 15")
    a("s_nop 15")
    def tilemax(S, t):
        a("v_max3_f32 v%d, v%d, v%d, v%d", t, S, S + 1, S + 2)
        for i in range(3, 15, 2):
            a("v_max3_f32 v%d, v%d, v%d, v%d", t, t, S + i, S + i + 1)
        a("v_max_f32 v%d, v%d, v%d", t, t, S + 15)
    for qt in range(2):
        S = ss(qt, 0)
        tilemax(S, vT0)
        a("v_mov_b32 v%d, v%d", vT1, vT0)
        a("s_nop 1")
        a("v_permlane32_swap_b32 v%d, v%d", vT0, vT1)
        a("v_max_f32 v%d, v%d, v%d", vT0, vT0, vT1)
        for i in range(16):
            a("v_sub_f32 v%d, v%d, v%d", S + i, S + i, vT0)
        for i in range(16):
            a("v_sub_f32 v%d, 0, v%d", nm(qt) + i, vT0)
    a("s_mov_b32 s%d, 0", sSTG)
    a("s_add_u32 s%d, s%d, %d", sDST, sDST0, 2 * STG)
    a("s_mov_b32 s%d, %d", sSOFF, 2 * 12288)
    a("s_mov_b32 s%d, 8", sCNT)
    a("v_mov_b32 v%d, v%d", cK1, vK1)
    a("v_mov_b32 v%d, v%d", cK2, vK2)
    a("v_mov_b32 v%d, v%d", cV, vV)
    a("v_add_u32 v%d, %d, v%d", nK1, STG, vK1)
    a("v_add_u32 v%d, %d, v%d", nK2, STG, vK2)
    rare = []
    a.label("%s_loop" % name)
    for tt in range(4):
        cur = tt & 1
        nxt = cur ^ 1
        a.comment("---- tile %d" % tt)
        if tt == 2:
            a("s_waitcnt vmcnt(0)")
            a("s_barrier")
            for j in range(3):
                a("s_add_u32 m0, s%d, %d", sDST, j * 1024)
                a("s_add_u32 s%d, s%d, %d", sT0, sSOFF, j * 1024)
                a("buffer_load_dwordx4 v%d, %s, s%d offen lds", vDMA, sr(SKV, 4), sT0)
        a("ds_read_b128 %s, v%d offset:%d", vr(VF, 4), cV, tt * 3072)
        a("ds_read_b128 %s, v%d offset:%d", vr(VF + 4, 4), cV, tt * 3072 + 768)
        a("s_waitcnt lgkmcnt(2)")
        for qt in range(2):
            d = vr(ss(qt, nxt), 16)
            a("v_mfma_f32_32x32x16_bf16 %s, %s, %s, %s", d, vr(KF, 4), vr(qf(qt, 0), 4), vr(nm(qt), 16))
            a("v_mfma_f32_32x32x16_bf16 %s, %s, %s, %s", d, vr(KF + 4, 4), vr(qf(qt, 1), 4), d)
        if tt < 2:
            a("ds_read_b128 %s, v%d offset:%d", vr(KF, 4), cK1, (tt + 2) * 3072)
            a("ds_read_b128 %s, v%d offset:%d", vr(KF + 4, 4), cK2, (tt + 2) * 3072)
        else:
            a("ds_read_b128 %s, v%d offset:%d", vr(KF, 4), nK1, (tt - 2) * 3072)
            a("ds_read_b128 %s, v%d offset:%d", vr(KF + 4, 4), nK2, (tt - 2) * 3072)
        for qt in range(2):
            S = ss(qt, cur)
            tilemax(S, vT0)
            a("v_cmp_lt_f32 vcc, s%d, v%d", sTH, vT0)
            lr = "%s_rare_%d_%d" % (name, tt, qt)
            lb = "%s_back_%d_%d" % (name, tt, qt)
            a("s_cbranch_vccnz %s", lr)
            a.label(lb)
            rare.append((lr, lb, qt, cur, nxt))
            for i in range(4):
                a("v_exp_f32 v%d, v%d", S + i, S + i)
            for k in range(8):
                if 2 * k + 4 < 16:
                    a("v_exp_f32 v%d, v%d", S + 2 * k + 4, S + 2 * k + 4)
                    a("v_exp_f32 v%d, v%d", S + 2 * k + 5, S + 2 * k + 5)
                a("v_cvt_pk_bf16_f32 v%d, v%d, v%d", S + k, S + 2 * k, S + 2 * k + 1)
            if qt == 0:
                a("s_waitcnt lgkmcnt(2)")
            else:
                a("s_nop 0")
            a("s_nop 0")
            o = vr(oo(qt), 16)
            a("v_mfma_f32_32x32x16_bf16 %s, %s, %s, %s", o, vr(VF, 4), vr(S, 4), o)
            a("v_mfma_f32_32x32x16_bf16 %s, %s, %s, %s", o, vr(VF + 4, 4), vr(S + 4, 4), o)
    a("s_add_u32 s%d, s%d, %d", sSTG, sSTG, STG)
    a("s_cmp_eq_u32 s%d, %d", sSTG, 3 * STG)
    a("s_cselect_b32 s%d, 0, s%d", sSTG, sSTG)
    a("s_add_u32 s%d, s%d, %d", sT0, sSTG, STG)
    a("s_cmp_eq_u32 s%d, %d", sT0, 3 * STG)
    a("s_cselect_b32 s%d, 0, s%d", sT0, sT0)
    a("s_add_u32 s%d, s%d, %d", sT1, sT0, STG)
    a("s_cmp_eq_u32 s%d, %d", sT1, 3 * STG)
    a("s_cselect_b32 s%d, 0, s%d", sT1, sT1)
    a("s_add_u32 s%d, s%d, s%d", sDST, sDST0, sT1)
    a("s_add_u32 s%d, s%d, 12288", sSOFF, sSOFF)
    a("v_add_u32 v%d, s%d, v%d", cK1, sSTG, vK1)
    a("v_add_u32 v%d, s%d, v%d", cK2, sSTG, vK2)
    a("v_add_u32 v%d, s%d, v%d", cV, sSTG, vV)
    a("v_add_u32 v%d, s%d, v%d", nK1, sT0, vK1)
    a("v_add_u32 v%d, s%d, v%d", nK2, sT0, vK2)
    a("s_sub_u32 s%d, s%d, 1", sCNT, sCNT)
    a("s_cmp_lg_u32 s%d, 0", sCNT)
    a("s_cbranch_scc1 %s_loop", name)
    a("s_waitcnt vmcnt(0) lgkmcnt(0)")
    a("s_nop 15")
    a("s_nop 15")
    a("s_barrier")
    a("s_mul_i32 s%d, s%d, %d", sT0, sWQ, 2 * 13 * 256)
    a("v_lshlrev_b32 v%d, 2, v0", vT2)
    a("v_add_u32 v%d, s%d, v%d", vT2, sT0, vT2)
    a("s_cmp_eq_u32 s%d, 0", sKH)
    a("s_cbranch_scc1 %s_comb0", name)
    for qt in range(2):
        for r in range(12):
            a("ds_write_b32 v%d, v%d offset:%d", vT2, oo(qt) + r, (qt * 13 + r) * 256)
        a("ds_write_b32 v%d, v%d offset:%d", vT2, nm(qt), (qt * 13 + 12) * 256)
    a("s_waitcnt lgkmcnt(0)")
    a("s_barrier")
    a("s_branch %s_done", name)
    a.label("%s_comb0" % name)
    a("s_barrier")
    X = SS
    for qt in range(2):
        for r in range(13):
            a("ds_read_b32 v%d, v%d offset:%d", X + qt * 16 + r, vT2, (qt * 13 + r) * 256)
    a("v_and_b32 v%d, 31, v0", vT0)
    a("v_lshrrev_b32 v%d, 5, v0", vT1)
    a("s_lshl_b32 s%d, s%d, 8", sT0, sQB)
    a("s_lshl_b32 s%d, s%d, 6", sT1, sWQ)
    a("s_add_u32 s%d, s%d, s%d", sT0, sT0, sT1)
    a("v_add_u32 v%d, s%d, v%d", vT0, sT0, vT0)
    a("s_mov_b32 s%d, 1280", sT1)
    a("s_mul_i32 s%d, s%d, 40", sT0, sHEAD)
    a("v_lshlrev_b32 v%d, 3, v%d", vT1, vT1)
    a("v_add_u32 v%d, s%d, v%d", vT1, sT0, vT1)
    a("v_mad_u32_u24 v14, v%d, s%d, v%d", vT0, sT1, vT1)
    a("v_add_u32 v15, %d, v14", 32 * 1280)
    a("s_waitcnt lgkmcnt(0)")
    for qt in range(2):
        x = X + qt * 16
        o = oo(qt)
        a("v_min_f32 v%d, v%d, v%d", vT0, nm(qt), x + 12)
        a("v_sub_f32 v%d, v%d, v%d", vT1, vT0, nm(qt))
        a("v_sub_f32 v%d, v%d, v%d", vT2, vT0, x + 12)
        a("v_exp_f32 v%d, v%d", vT1, vT1)
        a("v_exp_f32 v%d, v%d", vT2, vT2)
        a("s_nop 0")
        for r in range(12):
            a("v_mul_f32 v%d, v%d, v%d", o + r, o + r, vT1)
            a("v_fmac_f32 v%d, v%d, v%d", o + r, x + r, vT2)
        a("v_mov_b32 v%d, v%d", vT0, o + 8)
        a("v_mov_b32 v%d, v%d", vT1, o + 8)
        a("s_nop 1")
        a("v_permlane32_swap_b32 v%d, v%d", vT0, vT1)
        a("v_rcp_f32 v%d, v%d", vT1, vT1)
        a("s_nop 0")
        for r in range(12):
            a("v_mul_f32 v%d, v%d, v%d", o + r, o + r, vT1)
        for j in range(3):
            a("v_cvt_pk_bf16_f32 v%d, v%d, v%d", o + 4 * j, o + 4 * j, o + 4 * j + 1)
            a("v_cvt_pk_bf16_f32 v%d, v%d, v%d", o + 4 * j + 1, o + 4 * j + 2, o + 4 * j + 3)
        for j in range(2):
            a("buffer_store_dwordx2 %s, v%d, %s, 0 offen offset:%d", vr(o + 4 * j, 2), 14 + qt, sr(SO, 4), 16 * j)
    a("v_cmp_gt_u32 vcc, 32, v0")
    a("s_and_saveexec_b64 s[34:35], vcc")
    a("s_cbranch_execz %s_done", name)
    for qt in range(2):
        a("buffer_store_dwordx2 %s, v%d, %s, 0 offen offset:%d", vr(oo(qt) + 8, 2), 14 + qt, sr(SO, 4), 32)
    a.label("%s_done" % name)
    a("s_endpgm")
    for (lr, lb, qt, cur, nxt) in rare:
        a.label(lr)
        a("s_nop 15")
        a("s_nop 7")
        a("v_mov_b32 v%d, v%d", vT1, vT0)
        a("s_nop 1")
        a("v_permlane32_swap_b32 v%d, v%d", vT0, vT1)
        a("v_max3_f32 v%d, v%d, v%d, 0", vT0, vT0, vT1)
        a("v_exp_f32 v%d, -v%d", vT1, vT0)
        for i in range(16):
            a("v_sub_f32 v%d, v%d, v%d", ss(qt, cur) + i, ss(qt, cur) + i, vT0)
        for i in range(16):
            a("v_sub_f32 v%d, v%d, v%d", ss(qt, nxt) + i, ss(qt, nxt) + i, vT0)
        for i in range(16):
            a("v_sub_f32 v%d, v%d, v%d", nm(qt) + i, nm(qt) + i, vT0)
        for i in range(16):
            a("v_mul_f32 v%d, v%d, v%d", oo(qt) + i, oo(qt) + i, vT1)
        a("s_nop 1")
        a("s_branch %s", lb)
    return name, VEND, 3 * STG, 512
```

```python
class Asm:
    def __init__(self):
        self.lines = []
        self.lbl = 0
    def __call__(self, s, *a):
        self.lines.append("    " + (s % a if a else s))
    def label(self, name):
        self.lines.append(name + ":")
    def newlabel(self, base="L"):
        self.lbl += 1
        return "%s_%d" % (base, self.lbl)
    def comment(self, s):
        self.lines.append("    ; " + s)
    def text(self):
        return "\n".join(self.lines) + "\n"

def vr(b, n):
    return "v[%d:%d]" % (b, b + n - 1)
def sr(b, n):
    return "s[%d:%d]" % (b, b + n - 1)

WS_QA = 0
WS_QB = 8 << 20
WS_KV = 12 << 20
WS_OA = 20 << 20
WS_OB = 24 << 20
WS_BYTES = 268435456

def kernel_header(a, name):
    a.lines.append(".globl %s" % name)
    a.lines.append(".p2align 8")
    a.lines.append(".type %s,@function" % name)
    a.lines.append("%s:" % name)

def kernel_desc(name, nvgpr, nsgpr=96):
    nv = (nvgpr + 3) // 4 * 4
    return "\n".join([
        ".p2align 6",
        ".amdhsa_kernel %s" % name,
        "  .amdhsa_next_free_vgpr %d" % nv,
        "  .amdhsa_next_free_sgpr %d" % nsgpr,
        "  .amdhsa_accum_offset %d" % nv,
        "  .amdhsa_group_segment_fixed_size 0",
        "  .amdhsa_kernarg_size 72",
        "  .amdhsa_user_sgpr_count 2",
        "  .amdhsa_user_sgpr_kernarg_segment_ptr 1",
        "  .amdhsa_system_sgpr_workgroup_id_x 1",
        ".end_amdhsa_kernel"]) + "\n"
```

```python
from common import *

class GemmCfg:
    def __init__(self, TM, WM, WN, ldw):
        self.TM, self.WM, self.WN, self.ldw = TM, WM, WN, ldw
        self.NW = WM * WN
        self.MT = TM // WM // 32
        self.NT = 128 // WN // 32
        self.NA = TM // 8 // self.NW
        self.NB = 16 // self.NW
        self.ABYTES = TM * 128
        self.STAGE = self.ABYTES + 64 * 256
        self.NST = 3
        self.KSTEPS = 10
        self.vDA = 8
        self.vDB = self.vDA + self.NA
        self.vRA = self.vDB + self.NB
        self.vRB = self.vRA + 12
        f = self.vRB + 3 * self.NT
        f = (f + 3) // 4 * 4
        self.vFA = f
        self.vFB = self.vFA + 2 * self.MT * 4
        self.vACC = self.vFB + 2 * self.NT * 4
        self.vEND = self.vACC + self.MT * self.NT * 16
    def acc(self, mt, nt):
        return self.vACC + (mt * self.NT + nt) * 16
    def fa(self, buf, mt):
        return self.vFA + (buf * self.MT + mt) * 4
    def fb(self, buf, nt):
        return self.vFB + (buf * self.NT + nt) * 4

S_SRDA = 12
S_SRDW = 16
S_SRDO = 20
S_WAVE = 24
S_MT = 25
S_NT = 26
S_BR = 27
S_LA = 28
S_LB = 29
S_SOFF = 30
S_T0 = 31
S_T1 = 32
S_T2 = 33
S_WMROW = 34
S_WNCOL = 35

def gemm_setup_lane_regs(a, c):
    a.comment("wave id, lane id")
    a("v_lshrrev_b32 v1, 6, v0")
    a("v_and_b32 v2, 63, v0")
    a("s_nop 0")
    a("v_readfirstlane_b32 s%d, v1", S_WAVE)
    a("s_nop 3")
    a("s_and_b32 s%d, s%d, %d", S_T0, S_WAVE, c.WM - 1)
    a("s_mul_i32 s%d, s%d, %d", S_WMROW, S_T0, c.MT * 32)
    a("s_lshr_b32 s%d, s%d, %d", S_T0, S_WAVE, {1: 0, 2: 1, 4: 2}[c.WM])
    a("s_mul_i32 s%d, s%d, %d", S_WNCOL, S_T0, c.NT * 32)
    a("s_mul_i32 s%d, s%d, %d", S_LA, S_WAVE, c.NA * 1024)
    a("s_mul_i32 s%d, s%d, %d", S_LB, S_WAVE, c.NB * 1024)
    a("s_add_u32 s%d, s%d, %d", S_LB, S_LB, c.ABYTES)
    a("v_lshrrev_b32 v3, 3, v2")
    a("s_mul_i32 s%d, s%d, %d", S_T0, S_WAVE, c.NA * 8)
    a("v_add_u32 v3, s%d, v3", S_T0)
    a("v_and_b32 v4, 7, v2")
    a("s_mov_b32 s%d, 1280", S_T1)
    for j in range(c.NA):
        a("v_add_u32 v5, %d, v3", 8 * j)
        a("v_bfe_u32 v6, v5, 1, 3")
        a("v_xor_b32 v6, v6, v4")
        a("v_lshlrev_b32 v6, 4, v6")
        a("v_mad_u32_u24 v%d, v5, s%d, v6", c.vDA + j, S_T1)
    a("v_lshrrev_b32 v3, 4, v2")
    a("v_lshlrev_b32 v4, 2, v3")
    a("v_and_b32 v5, 15, v2")
    a("v_xor_b32 v4, v4, v5")
    a("v_lshlrev_b32 v4, 4, v4")
    a("s_mul_i32 s%d, s%d, %d", S_T0, S_WAVE, c.NB * 4)
    a("v_add_u32 v3, s%d, v3", S_T0)
    a("s_mov_b32 s%d, %d", S_T1, c.ldw)
    for j in range(c.NB):
        a("v_add_u32 v5, %d, v3", 4 * j)
        a("v_mad_u32_u24 v%d, v5, s%d, v4", c.vDB + j, S_T1)
    a("v_and_b32 v3, 31, v2")
    a("v_add_u32 v3, s%d, v3", S_WMROW)
    a("v_lshrrev_b32 v4, 5, v2")
    a("v_bfe_u32 v5, v3, 1, 3")
    a("v_lshlrev_b32 v3, 7, v3")
    for ks in range(4):
        a("v_add_u32 v6, %d, v4", 2 * ks)
        a("v_xor_b32 v6, v6, v5")
        a("v_lshl_add_u32 v%d, v6, 4, v3", c.vRA + ks)
        for st in (1, 2):
            a("v_add_u32 v%d, %d, v%d", c.vRA + 4 * st + ks, st * c.STAGE, c.vRA + ks)
    a("v_bfe_u32 v3, v2, 2, 2")
    a("v_and_b32 v4, 3, v2")
    a("v_bfe_u32 v5, v2, 4, 1")
    a("v_lshrrev_b32 v6, 5, v2")
    a("v_lshl_add_u32 v6, v6, 3, v3")
    a("v_lshlrev_b32 v6, 8, v6")
    a("v_and_b32 v7, 1, v4")
    a("v_lshl_add_u32 v6, v7, 3, v6")
    a("v_add_u32 v6, %d, v6", c.ABYTES)
    a("v_lshrrev_b32 v4, 1, v4")
    a("v_lshl_add_u32 v4, v5, 1, v4")
    a("s_lshr_b32 s%d, s%d, 3", S_T0, S_WNCOL)
    a("v_add_u32 v4, s%d, v4", S_T0)
    a("v_lshlrev_b32 v3, 2, v3")
    for nt in range(c.NT):
        a("v_add_u32 v5, %d, v4", 4 * nt)
        a("v_xor_b32 v5, v5, v3")
        a("v_lshl_add_u32 v%d, v5, 4, v6", c.vRB + nt)
        for st in (1, 2):
            a("v_add_u32 v%d, %d, v%d", c.vRB + c.NT * st + nt, st * c.STAGE, c.vRB + nt)

def gemm_issue_dma(a, c, kstep):
    st = kstep % c.NST
    a("s_mov_b32 s%d, %d", S_SOFF, kstep * 128)
    for j in range(c.NA):
        a("s_add_u32 m0, s%d, %d", S_LA, st * c.STAGE + j * 1024)
        a("s_nop 0")
        a("buffer_load_dwordx4 v%d, %s, s%d offen lds", c.vDA + j, sr(S_SRDA, 4), S_SOFF)
    a("s_mov_b32 s%d, %d", S_SOFF, kstep * 64 * c.ldw)
    for j in range(c.NB):
        a("s_add_u32 m0, s%d, %d", S_LB, st * c.STAGE + j * 1024)
        a("s_nop 0")
        a("buffer_load_dwordx4 v%d, %s, s%d offen lds", c.vDB + j, sr(S_SRDW, 4), S_SOFF)

def gemm_frag_reads(a, c, st, ks, buf):
    for mt in range(c.MT):
        a("ds_read_b128 %s, v%d offset:%d", vr(c.fa(buf, mt), 4), c.vRA + 4 * st + ks, mt * 4096)
    for nt in range(c.NT):
        for j in range(2):
            a("ds_read_b64_tr_b16 %s, v%d offset:%d", vr(c.fb(buf, nt) + 2 * j, 2), c.vRB + c.NT * st + nt, (16 * ks + 4 * j) * 256)

def gemm_mainloop(a, c, orient):
    nread = c.MT + 2 * c.NT
    ndma = c.NA + c.NB
    for r in range(c.MT * c.NT * 16):
        a("v_mov_b32 v%d, 0", c.vACC + r)
    gemm_issue_dma(a, c, 0)
    gemm_issue_dma(a, c, 1)
    for i in range(c.KSTEPS):
        st = i % c.NST
        a.comment("---- k-step %d" % i)
        a("s_waitcnt vmcnt(%d)", ndma if i + 1 < c.KSTEPS else 0)
        a("s_barrier")
        gemm_frag_reads(a, c, st, 0, 0)
        if i + 2 < c.KSTEPS:
            gemm_issue_dma(a, c, i + 2)
        for ks in range(4):
            buf = ks & 1
            if ks < 3:
                gemm_frag_reads(a, c, st, ks + 1, buf ^ 1)
                a("s_waitcnt lgkmcnt(%d)", nread)
            else:
                a("s_waitcnt lgkmcnt(0)")
            for mt in range(c.MT):
                for nt in range(c.NT):
                    x = vr(c.fa(buf, mt), 4)
                    w = vr(c.fb(buf, nt), 4)
                    d = vr(c.acc(mt, nt), 16)
                    if orient == 'NT':
                        a("v_mfma_f32_32x32x16_bf16 %s, %s, %s, %s", d, w, x, d)
                    else:
                        a("v_mfma_f32_32x32x16_bf16 %s, %s, %s, %s", d, x, w, d)
    a("s_nop 15")
    a("s_nop 15")

def div20(a, vq, vrem, vn, stmp):
    a("v_mul_u32_u24 v%d, s%d, v%d", vq, stmp, vn)
    a("v_lshrrev_b32 v%d, 16, v%d", vq, vq)
    a("v_mul_u32_u24 v%d, 20, v%d", vrem, vq)
    a("v_sub_u32 v%d, v%d, v%d", vrem, vn, vrem)

def gen_qkv(a):
    c = GemmCfg(256, 4, 2, 3840)
    name = "qkv_kernel"
    kernel_header(a, name)
    a("s_cmp_ge_u32 s2, 240")
    a("s_cbranch_scc1 %s_done", name)
    a("s_load_dwordx4 s[4:7], s[0:1], 0")
    a("s_load_dwordx4 s[8:11], s[0:1], 24")
    a("s_load_dwordx2 s[36:37], s[0:1], 64")
    a("s_and_b32 s%d, s2, 7", S_T0)
    a("s_lshr_b32 s%d, s2, 3", S_T1)
    a("s_and_b32 s%d, s%d, 1", S_BR, S_T0)
    a("s_lshr_b32 s%d, s%d, 1", S_MT, S_T0)
    a("s_lshl_b32 s%d, s%d, 1", S_MT, S_MT)
    a("s_and_b32 s%d, s%d, 1", S_T2, S_T1)
    a("s_add_u32 s%d, s%d, s%d", S_MT, S_MT, S_T2)
    a("s_lshr_b32 s%d, s%d, 1", S_NT, S_T1)
    a("s_waitcnt lgkmcnt(0)")
    a("s_cmp_eq_u32 s%d, 0", S_BR)
    a("s_cselect_b64 s[4:5], s[4:5], s[8:9]")
    a("s_cselect_b64 s[6:7], s[6:7], s[10:11]")
    a("s_mul_i32 s%d, s%d, %d", S_T0, S_MT, 256 * 1280)
    a("s_add_u32 s%d, s4, s%d", S_SRDA, S_T0)
    a("s_addc_u32 s%d, s5, 0", S_SRDA + 1)
    a("s_mov_b32 s%d, %d", S_SRDA + 2, 256 * 1280)
    a("s_mov_b32 s%d, 0x00020000", S_SRDA + 3)
    a("s_lshl_b32 s%d, s%d, 8", S_T0, S_NT)
    a("s_add_u32 s%d, s6, s%d", S_SRDW, S_T0)
    a("s_addc_u32 s%d, s7, 0", S_SRDW + 1)
    a("s_sub_u32 s%d, %d, s%d", S_SRDW + 2, 640 * 3840, S_T0)
    a("s_mov_b32 s%d, 0x00020000", S_SRDW + 3)
    a("s_mov_b32 s%d, s36", S_SRDO)
    a("s_mov_b32 s%d, s37", S_SRDO + 1)
    a("s_mov_b32 s%d, %d", S_SRDO + 2, 32 << 20)
    a("s_mov_b32 s%d, 0x00020000", S_SRDO + 3)
    gemm_setup_lane_regs(a, c)
    a("s_cmp_eq_u32 s%d, 1", S_BR)
    a("s_cselect_b32 s%d, s%d, 0", S_T0, S_NT)
    a("s_cmp_ge_u32 s%d, 10", S_T0)
    a("s_cbranch_scc1 %s_vtile", name)
    gemm_mainloop(a, c, 'NT')
    a("v_and_b32 v2, 63, v0")
    a("v_and_b32 v3, 31, v2")
    a("v_lshrrev_b32 v4, 5, v2")
    a("v_lshlrev_b32 v4, 2, v4")
    a("s_lshl_b32 s%d, s%d, 7", S_T0, S_NT)
    a("s_add_u32 s%d, s%d, s%d", S_T0, S_T0, S_WNCOL)
    a("v_add_u32 v4, s%d, v4", S_T0)
    a("s_lshl_b32 s%d, s%d, 8", S_T1, S_MT)
    a("s_add_u32 s%d, s%d, s%d", S_T1, S_T1, S_WMROW)
    a("v_add_u32 v5, s%d, v3", S_T1)
    a("s_cmp_eq_u32 s%d, 1", S_BR)
    a("s_cbranch_scc1 %s_epiB", name)
    a("s_mov_b32 s%d, 3840", S_T2)
    a("v_mul_u32_u24 v6, s%d, v5", S_T2)
    a("v_lshl_add_u32 v6, v4, 1, v6")
    for mt in range(c.MT):
        for nt in range(c.NT):
            for j in range(4):
                r = c.acc(mt, nt) + 4 * j
                a("v_cvt_pk_bf16_f32 v%d, v%d, v%d", r, r, r + 1)
                a("v_cvt_pk_bf16_f32 v%d, v%d, v%d", r + 1, r + 2, r + 3)
    v7 = 7
    for mt in range(c.MT):
        if mt:
            a("v_add_u32 v6, %d, v6", 32 * 3840)
        for nt in range(c.NT):
            for j in range(4):
                r = c.acc(mt, nt) + 4 * j
                a("buffer_store_dwordx2 %s, v6, %s, 0 offen offset:%d", vr(r, 2), sr(S_SRDO, 4), (nt * 32 + 8 * j) * 2)
    a("s_branch %s_done", name)
    a.label("%s_epiB" % name)
    a("s_mov_b32 s%d, 3277", S_T2)
    a("s_cmp_ge_u32 s%d, 5", S_NT)
    a("s_cbranch_scc1 %s_epiK", name)
    SC = 0x3EA52A5C
    import struct, math
    sc = (20.0 ** -0.5) * math.log2(math.e)
    SC = struct.unpack('<I', struct.pack('<f', sc))[0]
    a("s_mov_b32 s%d, 0x%08x", S_T0, SC)
    a("v_lshlrev_b32 v5, 6, v5")
    a("v_add_u32 v5, %d, v5", WS_QB)
    for nt in range(c.NT):
        for j in range(4):
            a("v_add_u32 v1, %d, v4", nt * 32 + 8 * j)
            div20(a, 6, 7, 1, S_T2)
            a("v_lshlrev_b32 v6, 17, v6")
            a("v_lshl_add_u32 v6, v7, 1, v6")
            a("v_add_u32 v6, v6, v5")
            for mt in range(c.MT):
                r = c.acc(mt, nt) + 4 * j
                for t in range(4):
                    a("v_mul_f32 v%d, s%d, v%d", r + t, S_T0, r + t)
                a("v_cvt_pk_bf16_f32 v%d, v%d, v%d", r, r, r + 1)
                a("v_cvt_pk_bf16_f32 v%d, v%d, v%d", r + 1, r + 2, r + 3)
                a("buffer_store_dwordx2 %s, v6, %s, 0 offen offset:%d", vr(r, 2), sr(S_SRDO, 4), mt * 32 * 64)
    a("s_branch %s_done", name)
    a.label("%s_epiK" % name)
    a("v_subrev_u32 v4, 640, v4")
    a("s_lshr_b32 s%d, s%d, 5", S_T1, S_T1)
    a("s_mul_i32 s%d, s%d, 3072", S_T1, S_T1)
    a("s_add_u32 s%d, s%d, %d", S_T1, S_T1, WS_KV)
    a("v_lshlrev_b32 v5, 4, v3")
    a("v_add_u32 v5, s%d, v5", S_T1)
    a("s_mov_b32 s%d, %d", S_T0, 64 * 3072)
    a("v_mov_b32 v%d, 0" % (c.vFA)); a("v_mov_b32 v%d, 0" % (c.vFA + 1))
    for nt in range(c.NT):
        for j in range(4):
            a("v_add_u32 v1, %d, v4", nt * 32 + 8 * j)
            div20(a, 6, 7, 1, S_T2)
            a("v_mul_u32_u24 v6, s%d, v6", S_T0)
            a("v_lshrrev_b32 v1, 3, v7")
            a("v_lshl_add_u32 v6, v1, 9, v6")
            a("v_and_b32 v1, 7, v7")
            a("v_lshl_add_u32 v6, v1, 1, v6")
            a("v_add_u32 v6, v6, v5")
            a("v_cmp_eq_u32 vcc, 16, v7")
            for mt in range(c.MT):
                r = c.acc(mt, nt) + 4 * j
                a("v_cvt_pk_bf16_f32 v%d, v%d, v%d", r, r, r + 1)
                a("v_cvt_pk_bf16_f32 v%d, v%d, v%d", r + 1, r + 2, r + 3)
                a("buffer_store_dwordx2 %s, v6, %s, 0 offen offset:%d", vr(r, 2), sr(S_SRDO, 4), mt * 3072)
            a("s_and_saveexec_b64 s[38:39], vcc")
            a("s_cbranch_execz %s_kz_%d_%d", name, nt, j)
            for mt in range(c.MT):
                a("buffer_store_dwordx2 %s, v6, %s, 0 offen offset:%d", vr(c.vFA, 2), sr(S_SRDO, 4), mt * 3072 + 8)
            a.label("%s_kz_%d_%d" % (name, nt, j))
            a("s_mov_b64 exec, s[38:39]")
    a("s_branch %s_done", name)
    a.label("%s_vtile" % name)
    gemm_mainloop(a, c, 'TN')
    a("v_and_b32 v2, 63, v0")
    a("v_and_b32 v3, 31, v2")
    a("v_lshrrev_b32 v4, 5, v2")
    a("s_lshl_b32 s%d, s%d, 7", S_T0, S_NT)
    a("s_add_u32 s%d, s%d, s%d", S_T0, S_T0, S_WNCOL)
    a("s_sub_u32 s%d, s%d, 1280", S_T0, S_T0)
    a("v_add_u32 v3, s%d, v3", S_T0)
    a("s_lshl_b32 s%d, s%d, 8", S_T1, S_MT)
    a("s_add_u32 s%d, s%d, s%d", S_T1, S_T1, S_WMROW)
    a("s_lshr_b32 s%d, s%d, 5", S_T1, S_T1)
    a("s_mul_i32 s%d, s%d, 3072", S_T1, S_T1)
    a("s_add_u32 s%d, s%d, %d", S_T1, S_T1, WS_KV + 1536)
    a("v_mul_u32_u24 v5, 384, v4")
    a("v_add_u32 v5, s%d, v5", S_T1)
    a("s_mov_b32 s%d, 3277", S_T2)
    a("s_mov_b32 s%d, %d", S_T0, 64 * 3072)
    for t in range(4):
        a("v_mov_b32 v%d, 0x3f803f80", c.vFA + t)
    for nt in range(c.NT):
        a("v_add_u32 v1, %d, v3", nt * 32)
        div20(a, 6, 7, 1, S_T2)
        a("v_mul_u32_u24 v6, s%d, v6", S_T0)
        a("v_lshl_add_u32 v6, v7, 4, v6")
        a("v_add_u32 v6, v6, v5")
        a("v_cmp_eq_u32 vcc, 19, v7")
        for mt in range(c.MT):
            r = c.acc(mt, nt)
            for k in range(8):
                a("v_cvt_pk_bf16_f32 v%d, v%d, v%d", r + k, r + 2 * k, r + 2 * k + 1)
            for step in range(2):
                a("buffer_store_dwordx4 %s, v6, %s, 0 offen offset:%d", vr(r + 4 * step, 4), sr(S_SRDO, 4), mt * 3072 + step * 768)
        a("s_and_saveexec_b64 s[38:39], vcc")
        a("s_cbranch_execz %s_vo_%d", name, nt)
        for mt in range(c.MT):
            for step in range(2):
                a("buffer_store_dwordx4 %s, v6, %s, 0 offen offset:%d", vr(c.vFA, 4), sr(S_SRDO, 4), mt * 3072 + step * 768 + 16)
        a.label("%s_vo_%d" % (name, nt))
        a("s_mov_b64 exec, s[38:39]")
    a.label("%s_done" % name)
    a("s_endpgm")
    return name, c.vEND, c.STAGE * c.NST, 512

def gen_oproj(a):
    c = GemmCfg(64, 2, 2, 1280)
    name = "oproj_kernel"
    kernel_header(a, name)
    a("s_cmp_ge_u32 s2, 320")
    a("s_cbranch_scc1 %s_done", name)
    a("s_load_dwordx2 s[4:5], s[0:1], 16")
    a("s_load_dwordx2 s[6:7], s[0:1], 40")
    a("s_load_dwordx2 s[8:9], s[0:1], 48")
    a("s_load_dwordx2 s[36:37], s[0:1], 64")
    a("s_and_b32 s%d, s2, 7", S_T0)
    a("s_lshr_b32 s%d, s2, 3", S_T1)
    a("s_and_b32 s%d, s%d, 1", S_BR, S_T0)
    a("s_lshr_b32 s%d, s%d, 1", S_MT, S_T0)
    a("s_lshl_b32 s%d, s%d, 3", S_MT, S_MT)
    a("s_mul_i32 s%d, s%d, 52429", S_T2, S_T1)
    a("s_lshr_b32 s%d, s%d, 18", S_T2, S_T2)
    a("s_add_u32 s%d, s%d, s%d", S_MT, S_MT, S_T2)
    a("s_mul_i32 s%d, s%d, 5", S_T2, S_T2)
    a("s_sub_u32 s%d, s%d, s%d", S_NT, S_T1, S_T2)
    a("s_waitcnt lgkmcnt(0)")
    a("s_cmp_eq_u32 s%d, 0", S_BR)
    a("s_cselect_b64 s[6:7], s[4:5], s[6:7]")
    a("s_mov_b32 s%d, %d", S_T1, WS_OB)
    a("s_cselect_b32 s%d, %d, s%d", S_T1, WS_OA, S_T1)
    a("s_mul_i32 s%d, s%d, %d", S_T0, S_MT, 64 * 1280)
    a("s_add_u32 s%d, s%d, s%d", S_T0, S_T0, S_T1)
    a("s_add_u32 s%d, s36, s%d", S_SRDA, S_T0)
    a("s_addc_u32 s%d, s37, 0", S_SRDA + 1)
    a("s_mov_b32 s%d, %d", S_SRDA + 2, 64 * 1280)
    a("s_mov_b32 s%d, 0x00020000", S_SRDA + 3)
    a("s_lshl_b32 s%d, s%d, 8", S_T0, S_NT)
    a("s_add_u32 s%d, s6, s%d", S_SRDW, S_T0)
    a("s_addc_u32 s%d, s7, 0", S_SRDW + 1)
    a("s_sub_u32 s%d, %d, s%d", S_SRDW + 2, 640 * 1280, S_T0)
    a("s_mov_b32 s%d, 0x00020000", S_SRDW + 3)
    a("s_mov_b32 s%d, s8", S_SRDO)
    a("s_mov_b32 s%d, s9", S_SRDO + 1)
    a("s_mov_b32 s%d, %d", S_SRDO + 2, 2048 * 2560)
    a("s_mov_b32 s%d, 0x00020000", S_SRDO + 3)
    gemm_setup_lane_regs(a, c)
    gemm_mainloop(a, c, 'NT')
    a("v_and_b32 v2, 63, v0")
    a("v_and_b32 v3, 31, v2")
    a("v_lshrrev_b32 v4, 5, v2")
    a("v_lshlrev_b32 v4, 2, v4")
    a("s_lshl_b32 s%d, s%d, 7", S_T0, S_NT)
    a("s_add_u32 s%d, s%d, s%d", S_T0, S_T0, S_WNCOL)
    a("s_mul_i32 s%d, s%d, 640", S_T2, S_BR)
    a("s_add_u32 s%d, s%d, s%d", S_T0, S_T0, S_T2)
    a("v_add_u32 v4, s%d, v4", S_T0)
    a("s_lshl_b32 s%d, s%d, 6", S_T1, S_MT)
    a("s_add_u32 s%d, s%d, s%d", S_T1, S_T1, S_WMROW)
    a("v_add_u32 v5, s%d, v3", S_T1)
    a("s_mov_b32 s%d, 2560", S_T2)
    a("v_mul_u32_u24 v6, s%d, v5", S_T2)
    a("v_lshl_add_u32 v6, v4, 1, v6")
    for nt in range(c.NT):
        for j in range(4):
            r = c.acc(0, nt) + 4 * j
            a("v_cvt_pk_bf16_f32 v%d, v%d, v%d", r, r, r + 1)
            a("v_cvt_pk_bf16_f32 v%d, v%d, v%d", r + 1, r + 2, r + 3)
            a("buffer_store_dwordx2 %s, v6, %s, 0 offen offset:%d", vr(r, 2), sr(S_SRDO, 4), (nt * 32 + 8 * j) * 2)
    a.label("%s_done" % name)
    a("s_endpgm")
    return name, c.vEND, c.STAGE * c.NST, 256
```

```python
import sys
from common import *
from gemm import gen_qkv, gen_oproj
from attn import gen_local, gen_attn
from oproj import gen_oproj2

HDR = open('concat_heads__sliding_local_dilated__mha_block__prompt.s.ref').read().split('\n')
hdr = [l for l in HDR if l.startswith(';') and '@launch' not in l and 'Override' not in l and 'grid=ceil' not in l]

a = Asm()
ks = []
grids = {'qkv_kernel': 256, 'local_kernel': 256, 'attn_kernel': 256, 'oproj_kernel': 256}
for g in (gen_qkv, gen_attn, gen_oproj2):
    ks.append(g(a))
out = list(hdr)
for (name, nv, lds, blk) in ks:
    out.append("; @launch kernel=%s grid=(%d,1,1) block=(%d,1,1) lds=%d" % (name, grids[name], blk, lds))
out.append('.amdgcn_target "amdgcn-amd-amdhsa--gfx950"')
out.append('.text')
out.append(a.text())
out.append('.section .rodata,"a"')
for (name, nv, lds, blk) in ks:
    out.append(kernel_desc(name, nv))
dst = sys.argv[1] if len(sys.argv) > 1 else 'concat_heads__sliding_local_dilated__mha_block__prompt.s'
open(dst, 'w').write("\n".join(out))
print("written", dst, [(k[0], k[1], k[2]) for k in ks])
```

```python
from common import *
import struct, math

def f32bits(x):
    return struct.unpack('<I', struct.pack('<f', x))[0]

def gen_local(a):
    name = "local_kernel"
    kernel_header(a, name)
    a("s_cmp_ge_u32 s2, 256")
    a("s_cbranch_scc1 %s_done2", name)
    instr_begin(a)
    a("s_load_dwordx2 s[4:5], s[0:1], 64")
    a("v_and_b32 v1, 31, v0")
    a("v_lshrrev_b32 v2, 5, v0")
    a("s_lshl_b32 s3, s2, 3")
    a("v_add_u32 v2, s3, v2")
    a("v_mul_u32_u24 v1, 40, v1")
    a("s_waitcnt lgkmcnt(0)")
    a("s_mov_b32 s8, s4")
    a("s_mov_b32 s9, s5")
    a("s_mov_b32 s10, %d", 2048 * 3840)
    a("s_mov_b32 s11, 0x00020000")
    a("s_add_u32 s12, s4, %d", WS_OA)
    a("s_addc_u32 s13, s5, 0")
    a("s_mov_b32 s14, %d", 2048 * 1280)
    a("s_mov_b32 s15, 0x00020000")
    a("s_mov_b32 s16, 3840")
    Q, K, V = 16, 26, 106
    a("v_mad_u32_u24 v3, v2, s16, v1")
    for i in range(5):
        a("buffer_load_dwordx2 %s, v3, s[8:11], 0 offen offset:%d", vr(Q + 2 * i, 2), 8 * i)
    for w in range(8):
        a("v_subrev_u32 v4, %d, v2", 2 * w)
        a("v_max_i32 v4, 0, v4")
        a("v_mad_u32_u24 v%d, v4, s16, v1", 5 + w)
    for w in range(8):
        for i in range(5):
            a("buffer_load_dwordx2 %s, v%d, s[8:11], 0 offen offset:%d", vr(K + 10 * w + 2 * i, 2), 5 + w, 1280 + 8 * i)
    for w in range(8):
        for i in range(5):
            a("buffer_load_dwordx2 %s, v%d, s[8:11], 0 offen offset:%d", vr(V + 10 * w + 2 * i, 2), 5 + w, 2560 + 8 * i)
    L = 186
    a("s_waitcnt vmcnt(40)")
    for w in range(8):
        a("v_mov_b32 v%d, 0", L + w)
    for i in range(10):
        for w in range(8):
            a("v_dot2_f32_bf16 v%d, v%d, v%d, v%d", L + w, Q + i, K + 10 * w + i, L + w)
    a("s_nop 3")
    sc = (20.0 ** -0.5) * math.log2(math.e)
    a("s_mov_b32 s17, 0x%08x", f32bits(sc))
    a("v_mov_b32 v13, 0x%08x", f32bits(-1e30))
    for w in range(8):
        a("v_mul_f32 v%d, s17, v%d", L + w, L + w)
    for w in range(1, 8):
        a("v_cmp_le_u32 vcc, %d, v2", 2 * w)
        a("s_nop 1")
        a("v_cndmask_b32 v%d, v13, v%d, vcc", L + w, L + w)
    a("v_max3_f32 v14, v%d, v%d, v%d", L, L + 1, L + 2)
    a("v_max3_f32 v14, v14, v%d, v%d", L + 3, L + 4)
    a("v_max3_f32 v14, v14, v%d, v%d", L + 5, L + 6)
    a("v_max_f32 v14, v14, v%d", L + 7)
    for w in range(8):
        a("v_sub_f32 v%d, v%d, v14", L + w, L + w)
    for w in range(8):
        a("v_exp_f32 v%d, v%d", L + w, L + w)
    a("s_nop 0")
    a("v_add_f32 v15, v%d, v%d", L, L + 1)
    for w in range(2, 8):
        a("v_add_f32 v15, v15, v%d", L + w)
    a("v_rcp_f32 v15, v15")
    a("s_nop 0")
    for w in range(8):
        a("v_mul_f32 v%d, v%d, v15", L + w, L + w)
    O = 196
    for d in range(20):
        a("v_mov_b32 v%d, 0", O + d)
    a("s_waitcnt vmcnt(0)")
    for w in range(8):
        for i in range(10):
            src = V + 10 * w + i
            a("v_lshlrev_b32 v4, 16, v%d", src)
            a("v_and_b32 v5, 0xffff0000, v%d", src)
            a("v_fmac_f32 v%d, v%d, v4", O + 2 * i, L + w)
            a("v_fmac_f32 v%d, v%d, v5", O + 2 * i + 1, L + w)
    for i in range(10):
        a("v_cvt_pk_bf16_f32 v%d, v%d, v%d", Q + i, O + 2 * i, O + 2 * i + 1)
    a("s_mov_b32 s16, 1280")
    a("v_mad_u32_u24 v3, v2, s16, v1")
    for i in range(5):
        a("buffer_store_dwordx2 %s, v3, s[12:15], 0 offen offset:%d", vr(Q + 2 * i, 2), 8 * i)
    a.label("%s_done" % name)
    instr_end(a, 5)
    a.label("%s_done2" % name)
    a("s_endpgm")
    return name, 216, 0, 256

STG = 24576
THRESH = 60.0

def gen_attn(a):
    name = "attn_kernel"
    kernel_header(a, name)
    SKV, SQ, SO = 8, 12, 16
    sWAVE, sWQ, sKH, sHEAD, sQB = 20, 21, 22, 23, 24
    sSTG = 25
    sDST = 26
    sSOFF = 27
    sCNT = 28
    sTH = 29
    sT0, sT1 = 30, 31
    vDMA = 2
    vK1, vK2, vV = 3, 4, 5
    cK1, cK2, cV = 6, 7, 8
    nK1, nK2 = 9, 10
    vT0, vT1, vT2 = 11, 12, 13
    vMX = 192
    QF = 16
    KF = 32
    VF = 48
    NM = 64
    OO = 96
    SS = 128
    VEND = 194
    def qf(qt, step): return QF + (qt * 2 + step) * 4
    def nm(qt): return NM + 16 * qt
    def oo(qt): return OO + 16 * qt
    def ss(qt, buf): return SS + (qt * 2 + buf) * 16

    a("s_cmp_ge_u32 s2, 256")
    a("s_cbranch_scc1 %s_done2", name)
    instr_begin(a)
    a("s_load_dwordx2 s[4:5], s[0:1], 64")
    a("v_lshrrev_b32 v1, 6, v0")
    a("v_and_b32 v0, 63, v0")
    a("s_and_b32 s%d, s2, 7", sT0)
    a("v_readfirstlane_b32 s%d, v1", sWAVE)
    a("s_lshr_b32 s%d, s2, 3", sT1)
    a("s_lshl_b32 s%d, s%d, 2", sHEAD, sT0)
    a("s_lshr_b32 s%d, s%d, 3", sT0, sT1)
    a("s_add_u32 s%d, s%d, s%d", sHEAD, sHEAD, sT0)
    a("s_and_b32 s%d, s%d, 7", sQB, sT1)
    a("s_and_b32 s%d, s%d, 3", sWQ, sWAVE)
    a("s_lshr_b32 s%d, s%d, 2", sKH, sWAVE)
    a("s_mov_b32 s%d, 0x%08x", sTH, f32bits(THRESH))
    a("s_waitcnt lgkmcnt(0)")
    a("s_mul_i32 s%d, s%d, %d", sT0, sHEAD, 64 * 3072)
    a("s_add_u32 s%d, s%d, %d", sT0, sT0, WS_KV)
    a("s_add_u32 s%d, s4, s%d", SKV, sT0)
    a("s_addc_u32 s%d, s5, 0", SKV + 1)
    a("s_mov_b32 s%d, %d", SKV + 2, 64 * 3072)
    a("s_mov_b32 s%d, 0x00020000", SKV + 3)
    a("s_add_u32 s%d, s4, %d", SQ, WS_QB)
    a("s_addc_u32 s%d, s5, 0", SQ + 1)
    a("s_mov_b32 s%d, %d", SQ + 2, 2048 * 1280)
    a("s_mov_b32 s%d, 0x00020000", SQ + 3)
    a("s_add_u32 s%d, s4, %d", SO, WS_OB)
    a("s_addc_u32 s%d, s5, 0", SO + 1)
    a("s_mov_b32 s%d, %d", SO + 2, 2048 * 1280)
    a("s_mov_b32 s%d, 0x00020000", SO + 3)
    a("v_and_b32 v%d, 31, v0", vT0)
    a("v_lshrrev_b32 v%d, 5, v0", vT1)
    a("s_lshl_b32 s%d, s%d, 8", sT0, sQB)
    a("s_lshl_b32 s%d, s%d, 6", sT1, sWQ)
    a("s_add_u32 s%d, s%d, s%d", sT0, sT0, sT1)
    a("v_add_u32 v%d, s%d, v%d", vT2, sT0, vT0)
    a("s_mov_b32 s%d, 1280", sT1)
    a("s_mul_i32 s%d, s%d, 40", sT0, sHEAD)
    a("v_mov_b32 v14, s%d", sT0)
    a("v_mad_u32_u24 v%d, v%d, s%d, v14", vT2, vT2, sT1)
    a("v_lshl_add_u32 v14, v%d, 4, v%d", vT1, vT2)
    a("v_add_u32 v15, %d, v14", 32 * 1280)
    a("v_add_u32 v1, %d, v%d", 32 * 1280, vT2)
    for qt in range(2):
        a("buffer_load_dwordx2 %s, v%d, %s, 0 offen", vr(qf(qt, 0), 2), 14 + qt, sr(SQ, 4))
        a("buffer_load_dwordx2 %s, v%d, %s, 0 offen offset:8", vr(qf(qt, 0) + 2, 2), 14 + qt, sr(SQ, 4))
        a("buffer_load_dwordx2 %s, v%d, %s, 0 offen offset:32", vr(qf(qt, 1), 2), vT2 if qt == 0 else 1, sr(SQ, 4))
    a("s_mul_i32 s%d, s%d, 98304", sT0, sKH)
    a("s_mul_i32 s%d, s%d, 3072", sT1, sWQ)
    a("s_add_u32 s%d, s%d, s%d", sT0, sT0, sT1)
    a("v_lshlrev_b32 v%d, 4, v0", vDMA)
    a("v_add_u32 v%d, s%d, v%d", vDMA, sT0, vDMA)
    a("s_mul_i32 s%d, s%d, 12288", sDST, sKH)
    a("s_add_u32 s%d, s%d, s%d", sDST, sDST, sT1)
    sDST0 = 32
    a("s_mov_b32 s%d, s%d", sDST0, sDST)
    def dma(stage_lds_off_reg=None, imm_lds=None, soff_imm=None):
        pass
    for g in range(2):
        for j in range(3):
            a("s_add_u32 m0, s%d, %d", sDST0, g * STG + j * 1024)
            a("s_mov_b32 s%d, %d", sT0, g * 12288 + j * 1024)
            a("buffer_load_dwordx4 v%d, %s, s%d offen lds", vDMA, sr(SKV, 4), sT0)
    SA = 36
    LREG = 3 * STG
    a("s_mov_b32 s%d, s4", SA)
    a("s_mov_b32 s%d, s5", SA + 1)
    a("s_mov_b32 s%d, %d", SA + 2, 2048 * 3840)
    a("s_mov_b32 s%d, 0x00020000", SA + 3)
    a("s_add_u32 s%d, s4, %d", SA + 4, WS_OA)
    a("s_addc_u32 s%d, s5, 0", SA + 5)
    a("s_mov_b32 s%d, %d", SA + 6, 2048 * 1280)
    a("s_mov_b32 s%d, 0x00020000", SA + 7)
    a("s_lshl_b32 s44, s2, 3")
    a("s_lshl_b32 s45, s%d, 1", sWAVE)
    a("s_waitcnt vmcnt(6)")
    a("s_mul_i32 s%d, s%d, 12288", sT0, sKH)
    a("v_lshlrev_b32 v%d, 4, v0", vK1)
    a("v_add_u32 v%d, s%d, v%d", vK1, sT0, vK1)
    a("v_lshlrev_b32 v%d, 4, v%d", vK2, vT0)
    a("v_add_u32 v%d, s%d, v%d", vK2, sT0, vK2)
    a("v_add_u32 v%d, 1024, v%d", vK2, vK2)
    a("v_min_u32 v%d, 23, v%d", vV, vT0)
    a("v_lshlrev_b32 v%d, 4, v%d", vV, vV)
    a("v_mul_u32_u24 v14, 384, v%d", vT1)
    a("v_add_u32 v%d, v%d, v14", vV, vV)
    a("v_add_u32 v%d, s%d, v%d", vV, sT0, vV)
    a("v_add_u32 v%d, 1536, v%d", vV, vV)
    for r in range(32):
        a("v_mov_b32 v%d, 0", OO + r)
    a("v_cmp_gt_u32 vcc, 32, v0")
    a("s_nop 1")
    for qt in range(2):
        b = qf(qt, 1)
        a("v_cndmask_b32 v%d, 0, v%d, vcc", b, b)
        a("v_cndmask_b32 v%d, 0, v%d, vcc", b + 1, b + 1)
        a("v_mov_b32 v%d, 0", b + 2)
        a("v_mov_b32 v%d, 0", b + 3)
    a("s_waitcnt vmcnt(3)")
    a("s_barrier")
    a("ds_read_b128 %s, v%d", vr(KF, 4), vK1)
    a("ds_read_b128 %s, v%d", vr(KF + 4, 4), vK2)
    a("ds_read_b128 %s, v%d offset:3072", vr(KF + 8, 4), vK1)
    a("ds_read_b128 %s, v%d offset:3072", vr(KF + 12, 4), vK2)
    for r in range(8):
        a("v_mov_b32 v%d, 0", VF + 8 + r)
        a("v_mov_b32 v%d, 0", ss(1, 1) + r)
    a("s_waitcnt lgkmcnt(2)")
    for qt in range(2):
        d = vr(ss(qt, 0), 16)
        a("v_mfma_f32_32x32x16_bf16 %s, %s, %s, %s", d, vr(KF, 4), vr(qf(qt, 0), 4), vr(oo(qt), 16))
        a("v_mfma_f32_32x32x16_bf16 %s, %s, %s, %s", d, vr(KF + 4, 4), vr(qf(qt, 1), 4), d)
    a("s_nop 15")
    a("s_nop 15")
    def tilemax_ops(S, t):
        ops = ["v_max3_f32 v%d, v%d, v%d, v%d" % (t, S, S + 1, S + 2)]
        for i in range(3, 15, 2):
            ops.append("v_max3_f32 v%d, v%d, v%d, v%d" % (t, t, S + i, S + i + 1))
        ops.append("v_max_f32 v%d, v%d, v%d" % (t, t, S + 15))
        return ops
    for qt in range(2):
        S = ss(qt, 0)
        for o in tilemax_ops(S, vT0):
            a(o)
        a("v_mov_b32 v%d, v%d", vT1, vT0)
        a("s_nop 1")
        a("v_permlane32_swap_b32 v%d, v%d", vT0, vT1)
        a("v_max_f32 v%d, v%d, v%d", vT0, vT0, vT1)
        for i in range(16):
            a("v_sub_f32 v%d, v%d, v%d", S + i, S + i, vT0)
        for i in range(16):
            a("v_sub_f32 v%d, 0, v%d", nm(qt) + i, vT0)
    a("s_mov_b32 s%d, 0", sSTG)
    a("s_add_u32 s%d, s%d, %d", sDST, sDST0, 2 * STG)
    a("s_mov_b32 s%d, %d", sSOFF, 2 * 12288)
    a("s_mov_b32 s%d, 8", sCNT)
    a("v_mov_b32 v%d, v%d", cK1, vK1)
    a("v_mov_b32 v%d, v%d", cK2, vK2)
    a("v_mov_b32 v%d, v%d", cV, vV)
    a("v_add_u32 v%d, %d, v%d", nK1, STG, vK1)
    a("v_add_u32 v%d, %d, v%d", nK2, STG, vK2)
    rare = []
    def pv(qt, sbuf, vbuf, k):
        o = vr(oo(qt), 16)
        return "v_mfma_f32_32x32x16_bf16 %s, %s, %s, %s" % (o, vr(VF + 8 * vbuf + 4 * k, 4), vr(ss(qt, sbuf) + 4 * k, 4), o)
    def qk(qt, sbuf, kbuf, k):
        d = vr(ss(qt, sbuf), 16)
        c = vr(nm(qt), 16) if k == 0 else d
        return "v_mfma_f32_32x32x16_bf16 %s, %s, %s, %s" % (d, vr(KF + 8 * kbuf + 4 * k, 4), vr(qf(qt, k), 4), c)
    a("s_mov_b64 vcc, 0")
    instr_mark(a, 0)
    a.label("%s_loop" % name)
    for tt in range(4):
        cur = tt & 1
        nxt = cur ^ 1
        a.comment("---- tile %d" % tt)
        if tt == 2:
            a("s_waitcnt vmcnt(0)")
            a("s_barrier")
            for j in range(3):
                a("s_add_u32 m0, s%d, %d", sDST, j * 1024)
                a("s_add_u32 s%d, s%d, %d", sT0, sSOFF, j * 1024)
                a("buffer_load_dwordx4 v%d, %s, s%d offen lds", vDMA, sr(SKV, 4), sT0)
            a("s_cmp_lt_u32 s%d, 4", sCNT)
            a("s_cbranch_scc1 %s_nostage", name)
            for j in range(2):
                a("s_add_u32 s46, s45, %d", j)
                a("s_min_u32 s46, s46, 64")
                a("s_lshl_b32 s46, s46, 10")
                a("v_lshl_add_u32 v%d, v0, 4, s46", vT0)
                a("s_mov_b32 s47, 52429")
                a("v_lshrrev_b32 v%d, 9, v%d", vT1, vT0)
                a("v_mul_u32_u24 v%d, s47, v%d", vT1, vT1)
                a("v_lshrrev_b32 v%d, 18, v%d", vT1, vT1)
                a("v_mul_u32_u24 v%d, 2560, v%d", vT2, vT1)
                a("v_sub_u32 v%d, v%d, v%d", vT2, vT0, vT2)
                a("v_add_u32 v%d, 1280, v%d", vT2, vT2)
                a("v_add_u32 v%d, s44, v%d", vT1, vT1)
                a("v_subrev_u32 v%d, 14, v%d", vT1, vT1)
                a("v_max_i32 v%d, 0, v%d", vT1, vT1)
                a("v_subrev_u32 v14, 56320, v%d", vT0)
                a("v_lshrrev_b32 v15, 8, v14")
                a("v_mul_u32_u24 v15, s47, v15")
                a("v_lshrrev_b32 v15, 18, v15")
                a("v_mul_u32_u24 v1, 1280, v15")
                a("v_sub_u32 v14, v14, v1")
                a("v_add_u32 v15, s44, v15")
                a("s_mov_b32 s47, 56320")
                a("v_cmp_le_u32 s[48:49], s47, v%d", vT0)
                a("s_add_u32 m0, s46, %d", LREG)
                a("s_nop 1")
                a("v_cndmask_b32 v%d, v%d, v15, s[48:49]", vT1, vT1)
                a("v_cndmask_b32 v%d, v%d, v14, s[48:49]", vT2, vT2)
                a("s_mov_b32 s47, 3840")
                a("v_mad_u32_u24 v%d, v%d, s47, v%d", vT0, vT1, vT2)
                a("buffer_load_dwordx4 v%d, %s, 0 offen lds", vT0, sr(SA, 4))
            a("s_add_u32 s45, s45, 16")
            a.label("%s_nostage" % name)
        for qt in range(2):
            S = ss(qt, cur)
            if qt == 0:
                a("ds_read_b128 %s, v%d offset:%d", vr(VF + 8 * cur, 4), cV, tt * 3072)
                a("ds_read_b128 %s, v%d offset:%d", vr(VF + 8 * cur + 4, 4), cV, tt * 3072 + 768)
                m = [pv(1, nxt, nxt, 0), pv(1, nxt, nxt, 1), qk(0, nxt, nxt, 0), qk(0, nxt, nxt, 1)]
            else:
                if tt < 2:
                    a("ds_read_b128 %s, v%d offset:%d", vr(KF + 8 * cur, 4), cK1, (tt + 2) * 3072)
                    a("ds_read_b128 %s, v%d offset:%d", vr(KF + 8 * cur + 4, 4), cK2, (tt + 2) * 3072)
                else:
                    a("ds_read_b128 %s, v%d offset:%d", vr(KF + 8 * cur, 4), nK1, (tt - 2) * 3072)
                    a("ds_read_b128 %s, v%d offset:%d", vr(KF + 8 * cur + 4, 4), nK2, (tt - 2) * 3072)
                m = [pv(0, cur, cur, 0), pv(0, cur, cur, 1), qk(1, nxt, nxt, 0), qk(1, nxt, nxt, 1)]
            if qt == 0:
                mx = tilemax_ops(ss(1, cur), vMX + 1)
                cmpop = "v_cmp_lt_f32 vcc, s%d, v%d" % (sTH, vMX + 1)
            else:
                mx = tilemax_ops(ss(0, nxt), vMX + 0)
                cmpop = "v_cmp_lt_f32 vcc, s%d, v%d" % (sTH, vMX + 0)
            lr = "%s_rare_%d_%d" % (name, tt, qt)
            lb = "%s_back_%d_%d" % (name, tt, qt)
            a("s_cbranch_vccnz %s", lr)
            a.label(lb)
            rare.append((lr, lb, qt, cur, nxt))
            e = lambda i: "v_exp_f32 v%d, v%d" % (S + i, S + i)
            cv = lambda k: "v_cvt_pk_bf16_f32 v%d, v%d, v%d" % (S + k, S + 2 * k, S + 2 * k + 1)
            a(e(0)); a(e(1))
            if qt == 1:
                a("s_waitcnt lgkmcnt(2)")
            a(m[0])
            a(e(2)); a(mx[0]); a(e(3)); a(mx[1])
            a(e(4)); a(cv(0))
            a(m[1])
            a(e(5)); a(mx[2]); a(e(6)); a(cv(1)); a(e(7)); a(mx[3])
            if qt == 0:
                a("s_waitcnt lgkmcnt(2)")
            a(m[2])
            a(e(8)); a(cv(2)); a(e(9)); a(mx[4]); a(e(10)); a(cv(3)); a(e(11)); a(mx[5])
            a(m[3])
            a(e(12)); a(cv(4)); a(e(13)); a(mx[6]); a(e(14)); a(cv(5)); a(e(15)); a(mx[7])
            a(cv(6)); a(cmpop); a(cv(7))
    a("s_add_u32 s%d, s%d, %d", sSTG, sSTG, STG)
    a("s_cmp_eq_u32 s%d, %d", sSTG, 3 * STG)
    a("s_cselect_b32 s%d, 0, s%d", sSTG, sSTG)
    a("s_add_u32 s%d, s%d, %d", sT0, sSTG, STG)
    a("s_cmp_eq_u32 s%d, %d", sT0, 3 * STG)
    a("s_cselect_b32 s%d, 0, s%d", sT0, sT0)
    a("s_add_u32 s%d, s%d, %d", sT1, sT0, STG)
    a("s_cmp_eq_u32 s%d, %d", sT1, 3 * STG)
    a("s_cselect_b32 s%d, 0, s%d", sT1, sT1)
    a("s_add_u32 s%d, s%d, s%d", sDST, sDST0, sT1)
    a("s_add_u32 s%d, s%d, 12288", sSOFF, sSOFF)
    a("v_add_u32 v%d, s%d, v%d", cK1, sSTG, vK1)
    a("v_add_u32 v%d, s%d, v%d", cK2, sSTG, vK2)
    a("v_add_u32 v%d, s%d, v%d", cV, sSTG, vV)
    a("v_add_u32 v%d, s%d, v%d", nK1, sT0, vK1)
    a("v_add_u32 v%d, s%d, v%d", nK2, sT0, vK2)
    a("s_sub_u32 s%d, s%d, 1", sCNT, sCNT)
    a("s_cmp_lg_u32 s%d, 0", sCNT)
    a("s_cbranch_scc1 %s_loop", name)
    a(pv(1, 1, 1, 0))
    a(pv(1, 1, 1, 1))
    instr_mark(a, 1)
    a("s_waitcnt vmcnt(0) lgkmcnt(0)")
    a("s_nop 15")
    a("s_nop 15")
    a("s_barrier")
    a("s_mul_i32 s%d, s%d, %d", sT0, sWQ, 2 * 13 * 256)
    a("v_lshlrev_b32 v%d, 2, v0", vT2)
    a("v_add_u32 v%d, s%d, v%d", vT2, sT0, vT2)
    a("s_cmp_eq_u32 s%d, 0", sKH)
    a("s_cbranch_scc1 %s_comb0", name)
    for qt in range(2):
        for r in range(12):
            a("ds_write_b32 v%d, v%d offset:%d", vT2, oo(qt) + r, (qt * 13 + r) * 256)
        a("ds_write_b32 v%d, v%d offset:%d", vT2, nm(qt), (qt * 13 + 12) * 256)
    a("s_waitcnt lgkmcnt(0)")
    a("s_barrier")
    LQ, LK, LV = 64, 70, 118
    LL, LO = 32, 48
    a("v_mul_u32_u24 v58, 20, v0")
    sc = (20.0 ** -0.5) * math.log2(math.e)
    for tk in range(2):
        a("s_lshl_b32 s45, s%d, 1", sWQ)
        a("s_add_u32 s45, s45, %d", tk)
        a("s_add_u32 s46, s44, s45")
        a("s_mul_i32 s47, s45, 1280")
        a("s_add_u32 s47, s47, %d", LREG + 56320)
        a("v_add_u32 v59, s47, v58")
        for i in range(5):
            a("ds_read_b32 v%d, v59 offset:%d", LQ + i, 4 * i)
        a("s_mul_i32 s47, s45, 2560")
        a("s_add_u32 s47, s47, %d", LREG)
        a("v_add_u32 v59, s47, v58")
        for w in range(8):
            for i in range(5):
                a("ds_read_b32 v%d, v59 offset:%d", LK + 6 * w + i, (14 - 2 * w) * 2560 + 4 * i)
            if w % 2:
                a("s_waitcnt lgkmcnt(5)")
        for w in range(8):
            a("v_mov_b32 v%d, 0", LL + w)
        for d in range(10):
            a("v_mov_b32 v%d, 0", LO + d)
        a("s_waitcnt lgkmcnt(0)")
        for w in range(8):
            for i in range(5):
                a("ds_read_b32 v%d, v59 offset:%d", LV + 6 * w + i, (14 - 2 * w) * 2560 + 1280 + 4 * i)
            if w % 2:
                a("s_waitcnt lgkmcnt(5)")
        for i in range(5):
            for w in range(8):
                a("v_dot2_f32_bf16 v%d, v%d, v%d, v%d", LL + w, LQ + i, LK + 6 * w + i, LL + w)
        a("s_nop 3")
        for w in range(8):
            a("v_add_f32_dpp v%d, v%d, v%d quad_perm:[1,0,3,2] row_mask:0xf bank_mask:0xf", 40 + w, LL + w, LL + w)
        a("s_mov_b32 s47, 0x%08x", f32bits(sc))
        a("v_mov_b32 v59, 0x%08x", f32bits(-1e30))
        for w in range(8):
            a("v_mul_f32 v%d, s47, v%d", LL + w, 40 + w)
        for w in range(1, 8):
            a("s_cmp_ge_u32 s46, %d", 2 * w)
            a("s_cbranch_scc1 %s_lv_%d_%d", name, tk, w)
            a("v_mov_b32 v%d, v59", LL + w)
            a.label("%s_lv_%d_%d" % (name, tk, w))
        a("v_max3_f32 v60, v%d, v%d, v%d", LL, LL + 1, LL + 2)
        a("v_max3_f32 v60, v60, v%d, v%d", LL + 3, LL + 4)
        a("v_max3_f32 v60, v60, v%d, v%d", LL + 5, LL + 6)
        a("v_max_f32 v60, v60, v%d", LL + 7)
        for w in range(8):
            a("v_sub_f32 v%d, v%d, v60", LL + w, LL + w)
        for w in range(8):
            a("v_exp_f32 v%d, v%d", LL + w, LL + w)
        a("s_nop 0")
        a("v_add_f32 v61, v%d, v%d", LL, LL + 1)
        for w in range(2, 8):
            a("v_add_f32 v61, v61, v%d", LL + w)
        a("v_rcp_f32 v61, v61")
        a("s_nop 0")
        for w in range(8):
            a("v_mul_f32 v%d, v%d, v61", LL + w, LL + w)
        a("s_waitcnt lgkmcnt(0)")
        for w in range(8):
            for i in range(5):
                src = LV + 6 * w + i
                a("v_lshlrev_b32 v62, 16, v%d", src)
                a("v_and_b32 v63, 0xffff0000, v%d", src)
                a("v_fmac_f32 v%d, v%d, v62", LO + 2 * i, LL + w)
                a("v_fmac_f32 v%d, v%d, v63", LO + 2 * i + 1, LL + w)
        for i in range(5):
            a("v_cvt_pk_bf16_f32 v%d, v%d, v%d", 40 + i, LO + 2 * i, LO + 2 * i + 1)
        a("s_mul_i32 s47, s46, 1280")
        a("buffer_store_dwordx4 v[40:43], v58, %s, s47 offen", sr(SA + 4, 4))
        a("buffer_store_dword v44, v58, %s, s47 offen offset:16", sr(SA + 4, 4))
        a("s_nop 1")
    a("s_branch %s_done", name)
    a.label("%s_comb0" % name)
    a("s_barrier")
    X = SS
    for qt in range(2):
        for r in range(13):
            a("ds_read_b32 v%d, v%d offset:%d", X + qt * 16 + r, vT2, (qt * 13 + r) * 256)
    a("v_and_b32 v%d, 31, v0", vT0)
    a("v_lshrrev_b32 v%d, 5, v0", vT1)
    a("s_lshl_b32 s%d, s%d, 8", sT0, sQB)
    a("s_lshl_b32 s%d, s%d, 6", sT1, sWQ)
    a("s_add_u32 s%d, s%d, s%d", sT0, sT0, sT1)
    a("v_add_u32 v%d, s%d, v%d", vT0, sT0, vT0)
    a("s_mov_b32 s%d, 1280", sT1)
    a("s_mul_i32 s%d, s%d, 40", sT0, sHEAD)
    a("v_lshlrev_b32 v%d, 3, v%d", vT1, vT1)
    a("v_add_u32 v%d, s%d, v%d", vT1, sT0, vT1)
    a("v_mad_u32_u24 v14, v%d, s%d, v%d", vT0, sT1, vT1)
    a("v_add_u32 v15, %d, v14", 32 * 1280)
    a("s_waitcnt lgkmcnt(0)")
    for qt in range(2):
        x = X + qt * 16
        o = oo(qt)
        a("v_min_f32 v%d, v%d, v%d", vT0, nm(qt), x + 12)
        a("v_sub_f32 v%d, v%d, v%d", vT1, vT0, nm(qt))
        a("v_sub_f32 v%d, v%d, v%d", vT2, vT0, x + 12)
        a("v_exp_f32 v%d, v%d", vT1, vT1)
        a("v_exp_f32 v%d, v%d", vT2, vT2)
        a("s_nop 0")
        for r in range(12):
            a("v_mul_f32 v%d, v%d, v%d", o + r, o + r, vT1)
            a("v_fmac_f32 v%d, v%d, v%d", o + r, x + r, vT2)
        a("v_mov_b32 v%d, v%d", vT0, o + 8)
        a("v_mov_b32 v%d, v%d", vT1, o + 8)
        a("s_nop 1")
        a("v_permlane32_swap_b32 v%d, v%d", vT0, vT1)
        a("v_rcp_f32 v%d, v%d", vT1, vT1)
        a("s_nop 0")
        for r in range(12):
            a("v_mul_f32 v%d, v%d, v%d", o + r, o + r, vT1)
        for j in range(3):
            a("v_cvt_pk_bf16_f32 v%d, v%d, v%d", o + 4 * j, o + 4 * j, o + 4 * j + 1)
            a("v_cvt_pk_bf16_f32 v%d, v%d, v%d", o + 4 * j + 1, o + 4 * j + 2, o + 4 * j + 3)
        for j in range(2):
            a("buffer_store_dwordx2 %s, v%d, %s, 0 offen offset:%d", vr(o + 4 * j, 2), 14 + qt, sr(SO, 4), 16 * j)
    a("v_cmp_gt_u32 vcc, 32, v0")
    a("s_and_saveexec_b64 s[34:35], vcc")
    a("s_cbranch_execz %s_done", name)
    for qt in range(2):
        a("buffer_store_dwordx2 %s, v%d, %s, 0 offen offset:%d", vr(oo(qt) + 8, 2), 14 + qt, sr(SO, 4), 32)
    a.label("%s_done" % name)
    instr_end(a, 5)
    a.label("%s_done2" % name)
    a("s_endpgm")
    for (lr, lb, qt, cur, nxt) in rare:
        a.label(lr)
        a("s_nop 15")
        a("s_nop 7")
        a("v_mov_b32 v%d, v%d", vT0, vMX + qt)
        a("v_mov_b32 v%d, v%d", vT1, vMX + qt)
        a("s_nop 1")
        a("v_permlane32_swap_b32 v%d, v%d", vT0, vT1)
        a("v_max3_f32 v%d, v%d, v%d, 0", vT0, vT0, vT1)
        a("v_exp_f32 v%d, -v%d", vT1, vT0)
        for i in range(16):
            a("v_sub_f32 v%d, v%d, v%d", ss(qt, cur) + i, ss(qt, cur) + i, vT0)
        for i in range(16):
            a("v_sub_f32 v%d, v%d, v%d", nm(qt) + i, nm(qt) + i, vT0)
        for i in range(16):
            a("v_mul_f32 v%d, v%d, v%d", oo(qt) + i, oo(qt) + i, vT1)
        a("s_nop 1")
        a("s_branch %s", lb)
    return name, VEND, 3 * STG + 66560, 512
```

```python
class Asm:
    def __init__(self):
        self.lines = []
        self.lbl = 0
    def __call__(self, s, *a):
        self.lines.append("    " + (s % a if a else s))
    def label(self, name):
        self.lines.append(name + ":")
    def newlabel(self, base="L"):
        self.lbl += 1
        return "%s_%d" % (base, self.lbl)
    def comment(self, s):
        self.lines.append("    ; " + s)
    def text(self):
        return "\n".join(self.lines) + "\n"

def vr(b, n):
    return "v[%d:%d]" % (b, b + n - 1)
def sr(b, n):
    return "s[%d:%d]" % (b, b + n - 1)

WS_QA = 0
WS_QB = 8 << 20
WS_KV = 12 << 20
WS_OA = 20 << 20
WS_OB = 24 << 20
WS_BYTES = 268435456

def kernel_header(a, name):
    a.lines.append(".globl %s" % name)
    a.lines.append(".p2align 8")
    a.lines.append(".type %s,@function" % name)
    a.lines.append("%s:" % name)

def kernel_desc(name, nvgpr, nsgpr=96):
    nv = (nvgpr + 3) // 4 * 4
    return "\n".join([
        ".p2align 6",
        ".amdhsa_kernel %s" % name,
        "  .amdhsa_next_free_vgpr %d" % nv,
        "  .amdhsa_next_free_sgpr %d" % nsgpr,
        "  .amdhsa_accum_offset %d" % nv,
        "  .amdhsa_group_segment_fixed_size 0",
        "  .amdhsa_kernarg_size 72",
        "  .amdhsa_user_sgpr_count 2",
        "  .amdhsa_user_sgpr_kernarg_segment_ptr 1",
        "  .amdhsa_system_sgpr_workgroup_id_x 1",
        ".end_amdhsa_kernel"]) + "\n"

import os
INSTR = bool(os.environ.get("INSTR"))
KIDX = [0]
def instr_begin(a):
    if not INSTR: return
    a("s_mov_b32 s78, 0"); a("s_mov_b32 s80, 0")
    a("s_memrealtime s[62:63]")
    a("s_memtime s[60:61]")
    a("s_load_dwordx2 s[64:65], s[0:1], 64")
    a("s_waitcnt lgkmcnt(0)")
def instr_mark(a, idx):
    if not INSTR: return
    a("s_memtime s[%d:%d]", 78 + 2 * idx, 79 + 2 * idx)
    a("s_waitcnt lgkmcnt(0)")
def instr_end(a, wgsel=0):
    if not INSTR: return
    a("s_memrealtime s[68:69]")
    a("s_memtime s[66:67]")
    a("s_waitcnt lgkmcnt(0)")
    a("s_sub_u32 s66, s66, s60")
    a("s_add_u32 s72, s64, %d", (48 << 20) + KIDX[0] * (256 << 10))
    a("s_addc_u32 s73, s65, 0"); a("s_mov_b32 s74, %d", 256 << 10); a("s_mov_b32 s75, 0x00020000")
    a("s_mov_b64 exec, -1")
    a("v_mbcnt_lo_u32_b32 v1, -1, 0")
    a("v_mbcnt_hi_u32_b32 v1, -1, v1")
    a("v_cmp_eq_u32 vcc, 0, v1")
    a("s_and_b64 exec, exec, vcc")
    a("s_getreg_b32 s70, hwreg(HW_REG_HW_ID)")
    a("s_lshl_b32 s71, s2, 8")
    a("s_and_b32 s76, s70, 15")
    a("s_bfe_u32 s77, s70, 0x20004")
    a("s_lshl_b32 s77, s77, 2")
    a("s_and_b32 s76, s76, 3")
    a("s_add_u32 s76, s76, s77")
    a("s_lshl_b32 s76, s76, 4")
    a("s_add_u32 s71, s71, s76")
    a("v_mov_b32 v1, s71")
    a("v_mov_b32 v4, s62"); a("v_mov_b32 v5, s68"); a("v_mov_b32 v6, s66"); a("s_sub_u32 s80, s80, s78"); a("s_sub_u32 s78, s78, s60"); a("s_lshl_b32 s78, s78, 16"); a("s_lshr_b32 s80, s80, 4"); a("s_or_b32 s80, s80, s78"); a("v_mov_b32 v7, s80")
    a("buffer_store_dwordx4 v[4:7], v1, s[72:75], 0 offen")
    KIDX[0] += 1
```

```python
from common import *

class GemmCfg:
    def __init__(self, TM, WM, WN, ldw):
        self.TM, self.WM, self.WN, self.ldw = TM, WM, WN, ldw
        self.NW = WM * WN
        self.MT = TM // WM // 32
        self.NT = 128 // WN // 32
        self.NA = TM // 8 // self.NW
        self.NB = 16 // self.NW
        self.ABYTES = TM * 128
        self.STAGE = self.ABYTES + 64 * 256
        self.NST = 3
        self.KSTEPS = 10
        self.vDA = 8
        self.vDB = self.vDA + self.NA
        self.vRA = self.vDB + self.NB
        self.vRB = self.vRA + 12
        f = self.vRB + 3 * self.NT
        f = (f + 3) // 4 * 4
        self.vFA = f
        self.vFB = self.vFA + 2 * self.MT * 4
        self.vACC = self.vFB + 2 * self.NT * 4
        self.vEND = self.vACC + self.MT * self.NT * 16
    def acc(self, mt, nt):
        return self.vACC + (mt * self.NT + nt) * 16
    def fa(self, buf, mt):
        return self.vFA + (buf * self.MT + mt) * 4
    def fb(self, buf, nt):
        return self.vFB + (buf * self.NT + nt) * 4

S_SRDA = 12
S_SRDW = 16
S_SRDO = 20
S_WAVE = 24
S_MT = 25
S_NT = 26
S_BR = 27
S_LA = 28
S_LB = 29
S_SOFF = 30
S_T0 = 31
S_T1 = 32
S_T2 = 33
S_WMROW = 34
S_WNCOL = 35

def gemm_setup_lane_regs(a, c):
    a.comment("wave id, lane id")
    a("v_lshrrev_b32 v1, 6, v0")
    a("v_and_b32 v2, 63, v0")
    a("s_nop 0")
    a("v_readfirstlane_b32 s%d, v1", S_WAVE)
    a("s_nop 3")
    a("s_and_b32 s%d, s%d, %d", S_T0, S_WAVE, c.WM - 1)
    a("s_mul_i32 s%d, s%d, %d", S_WMROW, S_T0, c.MT * 32)
    a("s_lshr_b32 s%d, s%d, %d", S_T0, S_WAVE, {1: 0, 2: 1, 4: 2}[c.WM])
    a("s_mul_i32 s%d, s%d, %d", S_WNCOL, S_T0, c.NT * 32)
    a("s_mul_i32 s%d, s%d, %d", S_LA, S_WAVE, c.NA * 1024)
    a("s_mul_i32 s%d, s%d, %d", S_LB, S_WAVE, c.NB * 1024)
    a("s_add_u32 s%d, s%d, %d", S_LB, S_LB, c.ABYTES)
    a("v_lshrrev_b32 v3, 3, v2")
    a("s_mul_i32 s%d, s%d, %d", S_T0, S_WAVE, c.NA * 8)
    a("v_add_u32 v3, s%d, v3", S_T0)
    a("v_and_b32 v4, 7, v2")
    a("s_mov_b32 s%d, 1280", S_T1)
    for j in range(c.NA):
        a("v_add_u32 v5, %d, v3", 8 * j)
        a("v_bfe_u32 v6, v5, 1, 3")
        a("v_xor_b32 v6, v6, v4")
        a("v_lshlrev_b32 v6, 4, v6")
        a("v_mad_u32_u24 v%d, v5, s%d, v6", c.vDA + j, S_T1)
    a("v_lshrrev_b32 v3, 4, v2")
    a("v_lshlrev_b32 v4, 2, v3")
    a("v_and_b32 v5, 15, v2")
    a("v_xor_b32 v4, v4, v5")
    a("v_lshlrev_b32 v4, 4, v4")
    a("s_mul_i32 s%d, s%d, %d", S_T0, S_WAVE, c.NB * 4)
    a("v_add_u32 v3, s%d, v3", S_T0)
    a("s_mov_b32 s%d, %d", S_T1, c.ldw)
    for j in range(c.NB):
        a("v_add_u32 v5, %d, v3", 4 * j)
        a("v_mad_u32_u24 v%d, v5, s%d, v4", c.vDB + j, S_T1)
    a("v_and_b32 v3, 31, v2")
    a("v_add_u32 v3, s%d, v3", S_WMROW)
    a("v_lshrrev_b32 v4, 5, v2")
    a("v_bfe_u32 v5, v3, 1, 3")
    a("v_lshlrev_b32 v3, 7, v3")
    for ks in range(4):
        a("v_add_u32 v6, %d, v4", 2 * ks)
        a("v_xor_b32 v6, v6, v5")
        a("v_lshl_add_u32 v%d, v6, 4, v3", c.vRA + ks)
        for st in (1, 2):
            a("v_add_u32 v%d, %d, v%d", c.vRA + 4 * st + ks, st * c.STAGE, c.vRA + ks)
    a("v_bfe_u32 v3, v2, 2, 2")
    a("v_and_b32 v4, 3, v2")
    a("v_bfe_u32 v5, v2, 4, 1")
    a("v_lshrrev_b32 v6, 5, v2")
    a("v_lshl_add_u32 v6, v6, 3, v3")
    a("v_lshlrev_b32 v6, 8, v6")
    a("v_and_b32 v7, 1, v4")
    a("v_lshl_add_u32 v6, v7, 3, v6")
    a("v_add_u32 v6, %d, v6", c.ABYTES)
    a("v_lshrrev_b32 v4, 1, v4")
    a("v_lshl_add_u32 v4, v5, 1, v4")
    a("s_lshr_b32 s%d, s%d, 3", S_T0, S_WNCOL)
    a("v_add_u32 v4, s%d, v4", S_T0)
    a("v_lshlrev_b32 v3, 2, v3")
    for nt in range(c.NT):
        a("v_add_u32 v5, %d, v4", 4 * nt)
        a("v_xor_b32 v5, v5, v3")
        a("v_lshl_add_u32 v%d, v5, 4, v6", c.vRB + nt)
        for st in (1, 2):
            a("v_add_u32 v%d, %d, v%d", c.vRB + c.NT * st + nt, st * c.STAGE, c.vRB + nt)

import os
EXP = os.environ.get("EXP", "")
MARKSTEP = int(os.environ.get("MARKSTEP", "0"))
def gemm_issue_dma(a, c, kstep):
    st = kstep % c.NST
    if "nodma" in EXP and kstep > 2:
        return
    a("s_mov_b32 s%d, %d", S_SOFF, kstep * 128)
    for j in range(c.NA):
        a("s_add_u32 m0, s%d, %d", S_LA, st * c.STAGE + j * 1024)
        a("s_nop 0")
        a("buffer_load_dwordx4 v%d, %s, s%d offen lds", c.vDA + j, sr(S_SRDA, 4), S_SOFF)
    a("s_mov_b32 s%d, %d", S_SOFF, kstep * 64 * c.ldw)
    for j in range(c.NB):
        a("s_add_u32 m0, s%d, %d", S_LB, st * c.STAGE + j * 1024)
        a("s_nop 0")
        a("buffer_load_dwordx4 v%d, %s, s%d offen lds", c.vDB + j, sr(S_SRDW, 4), S_SOFF)

def gemm_frag_reads(a, c, st, ks, buf):
    for mt in range(c.MT):
        a("ds_read_b128 %s, v%d offset:%d", vr(c.fa(buf, mt), 4), c.vRA + 4 * st + ks, mt * 4096)
    for nt in range(c.NT):
        for j in range(2):
            a("ds_read_b64_tr_b16 %s, v%d offset:%d", vr(c.fb(buf, nt) + 2 * j, 2), c.vRB + c.NT * st + nt, (16 * ks + 4 * j) * 256)

def gemm_mainloop(a, c, orient, touch=None):
    nread = c.MT + 2 * c.NT
    ndma = c.NA + c.NB
    for r in range(c.MT * c.NT * 16):
        a("v_mov_b32 v%d, 0", c.vACC + r)
    gemm_issue_dma(a, c, 0)
    gemm_issue_dma(a, c, 1)
    for i in range(c.KSTEPS):
        st = i % c.NST
        a.comment("---- k-step %d" % i)
        a("s_waitcnt vmcnt(%d)", ndma if i + 1 < c.KSTEPS else 0)
        a("s_barrier")
        if i == MARKSTEP:
            instr_mark(a, 0)
        gemm_frag_reads(a, c, st, 0, 0)
        if i + 2 < c.KSTEPS:
            gemm_issue_dma(a, c, i + 2)
        for ks in range(4):
            buf = ks & 1
            if ks < 3:
                gemm_frag_reads(a, c, st, ks + 1, buf ^ 1)
                a("s_waitcnt lgkmcnt(%d)", nread)
            else:
                a("s_waitcnt lgkmcnt(0)")
            for mt in range(c.MT):
                for nt in range(c.NT):
                    x = vr(c.fa(buf, mt), 4)
                    w = vr(c.fb(buf, nt), 4)
                    d = vr(c.acc(mt, nt), 16)
                    if "nomfma" in EXP:
                        continue
                    if orient == 'NT':
                        a("v_mfma_f32_32x32x16_bf16 %s, %s, %s, %s", d, w, x, d)
                    else:
                        a("v_mfma_f32_32x32x16_bf16 %s, %s, %s, %s", d, x, w, d)
    a("s_nop 15")
    a("s_nop 15")
    instr_mark(a, 1)

def div20(a, vq, vrem, vn, stmp):
    a("v_mul_u32_u24 v%d, s%d, v%d", vq, stmp, vn)
    a("v_lshrrev_b32 v%d, 16, v%d", vq, vq)
    a("v_mul_u32_u24 v%d, 20, v%d", vrem, vq)
    a("v_sub_u32 v%d, v%d, v%d", vrem, vn, vrem)

def gen_qkv(a):
    c = GemmCfg(256, 4, 2, 3840)
    name = "qkv_kernel"
    kernel_header(a, name)
    a("s_cmp_ge_u32 s2, 240")
    a("s_cbranch_scc1 %s_done2", name)
    instr_begin(a)
    a("s_load_dwordx4 s[4:7], s[0:1], 0")
    a("s_load_dwordx4 s[8:11], s[0:1], 24")
    a("s_load_dwordx2 s[36:37], s[0:1], 64")
    a("s_and_b32 s%d, s2, 7", S_T0)
    a("s_lshr_b32 s%d, s2, 3", S_T1)
    a("s_and_b32 s%d, s%d, 1", S_BR, S_T0)
    a("s_lshr_b32 s%d, s%d, 1", S_MT, S_T0)
    a("s_lshl_b32 s%d, s%d, 1", S_MT, S_MT)
    a("s_and_b32 s%d, s%d, 1", S_T2, S_T1)
    a("s_add_u32 s%d, s%d, s%d", S_MT, S_MT, S_T2)
    a("s_lshr_b32 s%d, s%d, 1", S_NT, S_T1)
    a("s_waitcnt lgkmcnt(0)")
    a("s_cmp_eq_u32 s%d, 0", S_BR)
    a("s_cselect_b64 s[4:5], s[4:5], s[8:9]")
    a("s_cselect_b64 s[6:7], s[6:7], s[10:11]")
    a("s_mul_i32 s%d, s%d, %d", S_T0, S_MT, 256 * 1280)
    a("s_add_u32 s%d, s4, s%d", S_SRDA, S_T0)
    a("s_addc_u32 s%d, s5, 0", S_SRDA + 1)
    a("s_mov_b32 s%d, %d", S_SRDA + 2, 256 * 1280)
    a("s_mov_b32 s%d, 0x00020000", S_SRDA + 3)
    a("s_lshl_b32 s%d, s%d, 8", S_T0, S_NT)
    a("s_add_u32 s%d, s6, s%d", S_SRDW, S_T0)
    a("s_addc_u32 s%d, s7, 0", S_SRDW + 1)
    a("s_sub_u32 s%d, %d, s%d", S_SRDW + 2, 640 * 3840, S_T0)
    a("s_mov_b32 s%d, 0x00020000", S_SRDW + 3)
    a("s_mov_b32 s%d, s36", S_SRDO)
    a("s_mov_b32 s%d, s37", S_SRDO + 1)
    a("s_mov_b32 s%d, %d", S_SRDO + 2, 32 << 20)
    a("s_mov_b32 s%d, 0x00020000", S_SRDO + 3)
    gemm_setup_lane_regs(a, c)
    a("s_cmp_eq_u32 s%d, 1", S_BR)
    a("s_cselect_b32 s%d, s%d, 0", S_T0, S_NT)
    a("s_cmp_ge_u32 s%d, 10", S_T0)
    a("s_cbranch_scc1 %s_vtile", name)
    def touch(a):
        a.comment("L2 warm-up: touch one dword per 128-B line of later k-slices (shared out over the workgroups)")
        a("v_and_b32 v2, 63, v0")
        a("s_and_b32 s%d, s%d, 1", S_T0, S_MT)
        a("s_lshl_b32 s%d, s%d, 9", S_T0, S_T0)
        a("s_lshl_b32 s%d, s%d, 6", S_T1, S_WAVE)
        a("s_add_u32 s%d, s%d, s%d", S_T0, S_T0, S_T1)
        a("v_add_u32 v3, s%d, v2", S_T0)
        a("v_lshrrev_b32 v4, 1, v3")
        a("v_add_u32 v4, 192, v4")
        a("v_and_b32 v3, 1, v3")
        a("v_lshlrev_b32 v3, 7, v3")
        a("s_mov_b32 s%d, 3840", S_T1)
        a("v_mad_u32_u24 v3, v4, s%d, v3", S_T1)
        a("buffer_load_dword v1, v3, %s, 0 offen", sr(S_SRDW, 4))
        a("s_min_u32 s%d, s%d, 2", S_T0, S_WAVE)
        a("s_lshl_b32 s%d, s%d, 6", S_T0, S_T0)
        a("v_add_u32 v3, s%d, v2", S_T0)
        a("v_lshrrev_b32 v4, 3, v3")
        a("s_mul_i32 s%d, s%d, 18", S_T1, S_NT)
        a("v_add_u32 v4, s%d, v4", S_T1)
        a("v_min_u32 v4, 255, v4")
        a("v_and_b32 v3, 7, v3")
        a("v_lshlrev_b32 v3, 7, v3")
        a("v_add_u32 v3, 384, v3")
        a("s_mov_b32 s%d, 1280", S_T1)
        a("v_mad_u32_u24 v3, v4, s%d, v3", S_T1)
        a("buffer_load_dword v1, v3, %s, 0 offen", sr(S_SRDA, 4))
        return 2
    gemm_mainloop(a, c, 'NT', touch)
    a("v_and_b32 v2, 63, v0")
    a("v_and_b32 v3, 31, v2")
    a("v_lshrrev_b32 v4, 5, v2")
    a("v_lshlrev_b32 v4, 2, v4")
    a("s_lshl_b32 s%d, s%d, 7", S_T0, S_NT)
    a("s_add_u32 s%d, s%d, s%d", S_T0, S_T0, S_WNCOL)
    a("v_add_u32 v4, s%d, v4", S_T0)
    a("s_lshl_b32 s%d, s%d, 8", S_T1, S_MT)
    a("s_add_u32 s%d, s%d, s%d", S_T1, S_T1, S_WMROW)
    a("v_add_u32 v5, s%d, v3", S_T1)
    a("s_mov_b32 s%d, 3277", S_T2)
    a("s_cmp_eq_u32 s%d, 1", S_BR)
    a("s_cselect_b32 s38, s%d, 0", S_NT)
    a("s_cmp_ge_u32 s38, 5")
    a("s_cbranch_scc1 %s_epiK", name)
    import struct, math
    sc = (20.0 ** -0.5) * math.log2(math.e)
    SC = struct.unpack('<I', struct.pack('<f', sc))[0]
    a("s_cmp_eq_u32 s%d, 1", S_BR)
    a("s_cselect_b32 s38, 0x%08x, 1.0", SC)
    a("s_mov_b32 s39, 3840")
    a("s_cselect_b32 s39, 1280, s39")
    a("s_mov_b32 s40, %d", WS_QA)
    a("s_cselect_b32 s40, %d, s40", WS_QB)
    a("s_barrier")
    CST = 272
    a("v_add_u32 v6, s%d, v3", S_WMROW)
    a("v_mul_u32_u24 v6, %d, v6", CST)
    a("v_lshrrev_b32 v7, 5, v2")
    a("v_lshlrev_b32 v7, 3, v7")
    a("s_lshl_b32 s41, s%d, 1", S_WNCOL)
    a("v_add3_u32 v6, v6, v7, s41")
    for mt in range(c.MT):
        for nt in range(c.NT):
            for j in range(4):
                r = c.acc(mt, nt) + 4 * j
                for q in range(4):
                    a("v_mul_f32 v%d, s38, v%d", r + q, r + q)
                a("v_cvt_pk_bf16_f32 v%d, v%d, v%d", r, r, r + 1)
                a("v_cvt_pk_bf16_f32 v%d, v%d, v%d", r + 1, r + 2, r + 3)
                a("ds_write_b64 v6, %s offset:%d", vr(r, 2), mt * 32 * CST + (nt * 32 + 8 * j) * 2)
    a("s_waitcnt lgkmcnt(0)")
    a("s_barrier")
    a("v_lshrrev_b32 v6, 4, v2")
    a("s_lshl_b32 s41, s%d, 5", S_WAVE)
    a("v_add_u32 v6, s41, v6")
    a("v_and_b32 v7, 15, v2")
    a("v_lshlrev_b32 v7, 4, v7")
    a("v_mul_u32_u24 v8, %d, v6", CST)
    a("v_add_u32 v8, v8, v7")
    a("s_lshl_b32 s41, s%d, 8", S_MT)
    a("v_add_u32 v6, s41, v6")
    a("v_mul_lo_u32 v6, v6, s39")
    a("s_lshl_b32 s41, s%d, 8", S_NT)
    a("s_add_u32 s41, s41, s40")
    a("v_add3_u32 v6, v6, v7, s41")
    a("s_lshl_b32 s41, s39, 2")
    D0 = c.vACC
    for it in range(8):
        a("ds_read_b128 %s, v8 offset:%d", vr(D0 + 4 * it, 4), it * 4 * CST)
    for it in range(8):
        a("s_waitcnt lgkmcnt(%d)", 7 - it)
        a("buffer_store_dwordx4 %s, v6, %s, 0 offen", vr(D0 + 4 * it, 4), sr(S_SRDO, 4))
        if it < 7:
            a("v_add_u32 v6, s41, v6")
    a("s_branch %s_done", name)
    a.label("%s_epiK" % name)
    a("v_subrev_u32 v4, 640, v4")
    a("s_lshr_b32 s%d, s%d, 5", S_T1, S_T1)
    a("s_mul_i32 s%d, s%d, 3072", S_T1, S_T1)
    a("s_add_u32 s%d, s%d, %d", S_T1, S_T1, WS_KV)
    a("v_lshlrev_b32 v5, 4, v3")
    a("v_add_u32 v5, s%d, v5", S_T1)
    a("s_mov_b32 s%d, %d", S_T0, 64 * 3072)
    a("v_mov_b32 v%d, 0" % (c.vFA)); a("v_mov_b32 v%d, 0" % (c.vFA + 1))
    for nt in range(c.NT):
        for j in range(4):
            a("v_add_u32 v1, %d, v4", nt * 32 + 8 * j)
            div20(a, 6, 7, 1, S_T2)
            a("v_mul_u32_u24 v6, s%d, v6", S_T0)
            a("v_lshrrev_b32 v1, 3, v7")
            a("v_lshl_add_u32 v6, v1, 9, v6")
            a("v_and_b32 v1, 7, v7")
            a("v_lshl_add_u32 v6, v1, 1, v6")
            a("v_add_u32 v6, v6, v5")
            a("v_cmp_eq_u32 vcc, 16, v7")
            for mt in range(c.MT):
                r = c.acc(mt, nt) + 4 * j
                a("v_cvt_pk_bf16_f32 v%d, v%d, v%d", r, r, r + 1)
                a("v_cvt_pk_bf16_f32 v%d, v%d, v%d", r + 1, r + 2, r + 3)
                a("buffer_store_dwordx2 %s, v6, %s, 0 offen offset:%d", vr(r, 2), sr(S_SRDO, 4), mt * 3072)
            a("s_and_saveexec_b64 s[38:39], vcc")
            a("s_cbranch_execz %s_kz_%d_%d", name, nt, j)
            for mt in range(c.MT):
                a("buffer_store_dwordx2 %s, v6, %s, 0 offen offset:%d", vr(c.vFA, 2), sr(S_SRDO, 4), mt * 3072 + 8)
            a.label("%s_kz_%d_%d" % (name, nt, j))
            a("s_mov_b64 exec, s[38:39]")
    a("s_branch %s_done", name)
    a.label("%s_vtile" % name)
    gemm_mainloop(a, c, 'TN', touch)
    a("v_and_b32 v2, 63, v0")
    a("v_and_b32 v3, 31, v2")
    a("v_lshrrev_b32 v4, 5, v2")
    a("s_lshl_b32 s%d, s%d, 7", S_T0, S_NT)
    a("s_add_u32 s%d, s%d, s%d", S_T0, S_T0, S_WNCOL)
    a("s_sub_u32 s%d, s%d, 1280", S_T0, S_T0)
    a("v_add_u32 v3, s%d, v3", S_T0)
    a("s_lshl_b32 s%d, s%d, 8", S_T1, S_MT)
    a("s_add_u32 s%d, s%d, s%d", S_T1, S_T1, S_WMROW)
    a("s_lshr_b32 s%d, s%d, 5", S_T1, S_T1)
    a("s_mul_i32 s%d, s%d, 3072", S_T1, S_T1)
    a("s_add_u32 s%d, s%d, %d", S_T1, S_T1, WS_KV + 1536)
    a("v_mul_u32_u24 v5, 384, v4")
    a("v_add_u32 v5, s%d, v5", S_T1)
    a("s_mov_b32 s%d, 3277", S_T2)
    a("s_mov_b32 s%d, %d", S_T0, 64 * 3072)
    for t in range(4):
        a("v_mov_b32 v%d, 0x3f803f80", c.vFA + t)
    for nt in range(c.NT):
        a("v_add_u32 v1, %d, v3", nt * 32)
        div20(a, 6, 7, 1, S_T2)
        a("v_mul_u32_u24 v6, s%d, v6", S_T0)
        a("v_lshl_add_u32 v6, v7, 4, v6")
        a("v_add_u32 v6, v6, v5")
        a("v_cmp_eq_u32 vcc, 19, v7")
        for mt in range(c.MT):
            r = c.acc(mt, nt)
            for k in range(8):
                a("v_cvt_pk_bf16_f32 v%d, v%d, v%d", r + k, r + 2 * k, r + 2 * k + 1)
            for step in range(2):
                a("buffer_store_dwordx4 %s, v6, %s, 0 offen offset:%d", vr(r + 4 * step, 4), sr(S_SRDO, 4), mt * 3072 + step * 768)
        a("s_and_saveexec_b64 s[38:39], vcc")
        a("s_cbranch_execz %s_vo_%d", name, nt)
        for mt in range(c.MT):
            for step in range(2):
                a("buffer_store_dwordx4 %s, v6, %s, 0 offen offset:%d", vr(c.vFA, 4), sr(S_SRDO, 4), mt * 3072 + step * 768 + 16)
        a.label("%s_vo_%d" % (name, nt))
        a("s_mov_b64 exec, s[38:39]")
    a.label("%s_done" % name)
    instr_end(a, 5)
    a.label("%s_done2" % name)
    a("s_endpgm")
    return name, c.vEND, c.STAGE * c.NST, 512

def gen_oproj(a):
    c = GemmCfg(64, 2, 2, 1280)
    name = "oproj_kernel"
    kernel_header(a, name)
    a("s_cmp_ge_u32 s2, 320")
    a("s_cbranch_scc1 %s_done2", name)
    instr_begin(a)
    a("s_load_dwordx2 s[4:5], s[0:1], 16")
    a("s_load_dwordx2 s[6:7], s[0:1], 40")
    a("s_load_dwordx2 s[8:9], s[0:1], 48")
    a("s_load_dwordx2 s[36:37], s[0:1], 64")
    a("s_and_b32 s%d, s2, 7", S_T0)
    a("s_lshr_b32 s%d, s2, 3", S_T1)
    a("s_and_b32 s%d, s%d, 1", S_BR, S_T0)
    a("s_lshr_b32 s%d, s%d, 1", S_MT, S_T0)
    a("s_lshl_b32 s%d, s%d, 3", S_MT, S_MT)
    a("s_mul_i32 s%d, s%d, 52429", S_T2, S_T1)
    a("s_lshr_b32 s%d, s%d, 18", S_T2, S_T2)
    a("s_add_u32 s%d, s%d, s%d", S_MT, S_MT, S_T2)
    a("s_mul_i32 s%d, s%d, 5", S_T2, S_T2)
    a("s_sub_u32 s%d, s%d, s%d", S_NT, S_T1, S_T2)
    a("s_waitcnt lgkmcnt(0)")
    a("s_cmp_eq_u32 s%d, 0", S_BR)
    a("s_cselect_b64 s[6:7], s[4:5], s[6:7]")
    a("s_mov_b32 s%d, %d", S_T1, WS_OB)
    a("s_cselect_b32 s%d, %d, s%d", S_T1, WS_OA, S_T1)
    a("s_mul_i32 s%d, s%d, %d", S_T0, S_MT, 64 * 1280)
    a("s_add_u32 s%d, s%d, s%d", S_T0, S_T0, S_T1)
    a("s_add_u32 s%d, s36, s%d", S_SRDA, S_T0)
    a("s_addc_u32 s%d, s37, 0", S_SRDA + 1)
    a("s_mov_b32 s%d, %d", S_SRDA + 2, 64 * 1280)
    a("s_mov_b32 s%d, 0x00020000", S_SRDA + 3)
    a("s_lshl_b32 s%d, s%d, 8", S_T0, S_NT)
    a("s_add_u32 s%d, s6, s%d", S_SRDW, S_T0)
    a("s_addc_u32 s%d, s7, 0", S_SRDW + 1)
    a("s_sub_u32 s%d, %d, s%d", S_SRDW + 2, 640 * 1280, S_T0)
    a("s_mov_b32 s%d, 0x00020000", S_SRDW + 3)
    a("s_mov_b32 s%d, s8", S_SRDO)
    a("s_mov_b32 s%d, s9", S_SRDO + 1)
    a("s_mov_b32 s%d, %d", S_SRDO + 2, 2048 * 2560)
    a("s_mov_b32 s%d, 0x00020000", S_SRDO + 3)
    gemm_setup_lane_regs(a, c)
    gemm_mainloop(a, c, 'NT')
    a("v_and_b32 v2, 63, v0")
    a("v_and_b32 v3, 31, v2")
    a("v_lshrrev_b32 v4, 5, v2")
    a("v_lshlrev_b32 v4, 2, v4")
    a("s_lshl_b32 s%d, s%d, 7", S_T0, S_NT)
    a("s_add_u32 s%d, s%d, s%d", S_T0, S_T0, S_WNCOL)
    a("s_mul_i32 s%d, s%d, 640", S_T2, S_BR)
    a("s_add_u32 s%d, s%d, s%d", S_T0, S_T0, S_T2)
    a("v_add_u32 v4, s%d, v4", S_T0)
    a("s_lshl_b32 s%d, s%d, 6", S_T1, S_MT)
    a("s_add_u32 s%d, s%d, s%d", S_T1, S_T1, S_WMROW)
    a("v_add_u32 v5, s%d, v3", S_T1)
    a("s_mov_b32 s%d, 2560", S_T2)
    a("v_mul_u32_u24 v6, s%d, v5", S_T2)
    a("v_lshl_add_u32 v6, v4, 1, v6")
    for nt in range(c.NT):
        for j in range(4):
            r = c.acc(0, nt) + 4 * j
            a("v_cvt_pk_bf16_f32 v%d, v%d, v%d", r, r, r + 1)
            a("v_cvt_pk_bf16_f32 v%d, v%d, v%d", r + 1, r + 2, r + 3)
            a("buffer_store_dwordx2 %s, v6, %s, 0 offen offset:%d", vr(r, 2), sr(S_SRDO, 4), (nt * 32 + 8 * j) * 2)
    a.label("%s_done" % name)
    instr_end(a, 5)
    a.label("%s_done2" % name)
    a("s_endpgm")
    return name, c.vEND, c.STAGE * c.NST, 256
```

```python
from common import *
import struct, math

def f32bits(x):
    return struct.unpack('<I', struct.pack('<f', x))[0]

def gen_local(a):
    name = "local_kernel"
    kernel_header(a, name)
    a("s_cmp_ge_u32 s2, 256")
    a("s_cbranch_scc1 %s_done2", name)
    instr_begin(a)
    a("s_load_dwordx2 s[4:5], s[0:1], 64")
    a("v_and_b32 v1, 31, v0")
    a("v_lshrrev_b32 v2, 5, v0")
    a("s_lshl_b32 s3, s2, 3")
    a("v_add_u32 v2, s3, v2")
    a("v_mul_u32_u24 v1, 40, v1")
    a("s_waitcnt lgkmcnt(0)")
    a("s_mov_b32 s8, s4")
    a("s_mov_b32 s9, s5")
    a("s_mov_b32 s10, %d", 2048 * 3840)
    a("s_mov_b32 s11, 0x00020000")
    a("s_add_u32 s12, s4, %d", WS_OA)
    a("s_addc_u32 s13, s5, 0")
    a("s_mov_b32 s14, %d", 2048 * 1280)
    a("s_mov_b32 s15, 0x00020000")
    a("s_mov_b32 s16, 3840")
    Q, K, V = 16, 26, 106
    a("v_mad_u32_u24 v3, v2, s16, v1")
    for i in range(5):
        a("buffer_load_dwordx2 %s, v3, s[8:11], 0 offen offset:%d", vr(Q + 2 * i, 2), 8 * i)
    for w in range(8):
        a("v_subrev_u32 v4, %d, v2", 2 * w)
        a("v_max_i32 v4, 0, v4")
        a("v_mad_u32_u24 v%d, v4, s16, v1", 5 + w)
    for w in range(8):
        for i in range(5):
            a("buffer_load_dwordx2 %s, v%d, s[8:11], 0 offen offset:%d", vr(K + 10 * w + 2 * i, 2), 5 + w, 1280 + 8 * i)
    for w in range(8):
        for i in range(5):
            a("buffer_load_dwordx2 %s, v%d, s[8:11], 0 offen offset:%d", vr(V + 10 * w + 2 * i, 2), 5 + w, 2560 + 8 * i)
    L = 186
    a("s_waitcnt vmcnt(40)")
    for w in range(8):
        a("v_mov_b32 v%d, 0", L + w)
    for i in range(10):
        for w in range(8):
            a("v_dot2_f32_bf16 v%d, v%d, v%d, v%d", L + w, Q + i, K + 10 * w + i, L + w)
    a("s_nop 3")
    sc = (20.0 ** -0.5) * math.log2(math.e)
    a("s_mov_b32 s17, 0x%08x", f32bits(sc))
    a("v_mov_b32 v13, 0x%08x", f32bits(-1e30))
    for w in range(8):
        a("v_mul_f32 v%d, s17, v%d", L + w, L + w)
    for w in range(1, 8):
        a("v_cmp_le_u32 vcc, %d, v2", 2 * w)
        a("s_nop 1")
        a("v_cndmask_b32 v%d, v13, v%d, vcc", L + w, L + w)
    a("v_max3_f32 v14, v%d, v%d, v%d", L, L + 1, L + 2)
    a("v_max3_f32 v14, v14, v%d, v%d", L + 3, L + 4)
    a("v_max3_f32 v14, v14, v%d, v%d", L + 5, L + 6)
    a("v_max_f32 v14, v14, v%d", L + 7)
    for w in range(8):
        a("v_sub_f32 v%d, v%d, v14", L + w, L + w)
    for w in range(8):
        a("v_exp_f32 v%d, v%d", L + w, L + w)
    a("s_nop 0")
    a("v_add_f32 v15, v%d, v%d", L, L + 1)
    for w in range(2, 8):
        a("v_add_f32 v15, v15, v%d", L + w)
    a("v_rcp_f32 v15, v15")
    a("s_nop 0")
    for w in range(8):
        a("v_mul_f32 v%d, v%d, v15", L + w, L + w)
    O = 196
    for d in range(20):
        a("v_mov_b32 v%d, 0", O + d)
    a("s_waitcnt vmcnt(0)")
    for w in range(8):
        for i in range(10):
            src = V + 10 * w + i
            a("v_lshlrev_b32 v4, 16, v%d", src)
            a("v_and_b32 v5, 0xffff0000, v%d", src)
            a("v_fmac_f32 v%d, v%d, v4", O + 2 * i, L + w)
            a("v_fmac_f32 v%d, v%d, v5", O + 2 * i + 1, L + w)
    for i in range(10):
        a("v_cvt_pk_bf16_f32 v%d, v%d, v%d", Q + i, O + 2 * i, O + 2 * i + 1)
    a("s_mov_b32 s16, 1280")
    a("v_mad_u32_u24 v3, v2, s16, v1")
    for i in range(5):
        a("buffer_store_dwordx2 %s, v3, s[12:15], 0 offen offset:%d", vr(Q + 2 * i, 2), 8 * i)
    a.label("%s_done" % name)
    instr_end(a, 5)
    a.label("%s_done2" % name)
    a("s_endpgm")
    return name, 216, 0, 256

STG = 24576
THRESH = 60.0

def gen_attn(a):
    name = "attn_kernel"
    kernel_header(a, name)
    SKV, SQ, SO = 8, 12, 16
    sWAVE, sWQ, sKH, sHEAD, sQB = 20, 21, 22, 23, 24
    sSTG = 25
    sDST = 26
    sSOFF = 27
    sCNT = 28
    sTH = 29
    sT0, sT1 = 30, 31
    vDMA = 2
    vK1, vK2, vV = 3, 4, 5
    cK1, cK2, cV = 6, 7, 8
    nK1, nK2 = 9, 10
    vT0, vT1, vT2 = 11, 12, 13
    vMX = 192
    QF = 16
    KF = 32
    VF = 48
    NM = 64
    OO = 96
    SS = 128
    VEND = 194
    def qf(qt, step): return QF + (qt * 2 + step) * 4
    def nm(qt): return NM + 16 * qt
    def oo(qt): return OO + 16 * qt
    def ss(qt, buf): return SS + (qt * 2 + buf) * 16

    a("s_cmp_ge_u32 s2, 256")
    a("s_cbranch_scc1 %s_done2", name)
    instr_begin(a)
    a("s_load_dwordx2 s[4:5], s[0:1], 64")
    a("v_lshrrev_b32 v1, 6, v0")
    a("v_and_b32 v0, 63, v0")
    a("s_and_b32 s%d, s2, 7", sT0)
    a("v_readfirstlane_b32 s%d, v1", sWAVE)
    a("s_lshr_b32 s%d, s2, 3", sT1)
    a("s_lshl_b32 s%d, s%d, 2", sHEAD, sT0)
    a("s_lshr_b32 s%d, s%d, 3", sT0, sT1)
    a("s_add_u32 s%d, s%d, s%d", sHEAD, sHEAD, sT0)
    a("s_and_b32 s%d, s%d, 7", sQB, sT1)
    a("s_and_b32 s%d, s%d, 3", sWQ, sWAVE)
    a("s_lshr_b32 s%d, s%d, 2", sKH, sWAVE)
    a("s_mov_b32 s%d, 0x%08x", sTH, f32bits(THRESH))
    a("s_waitcnt lgkmcnt(0)")
    a("s_mul_i32 s%d, s%d, %d", sT0, sHEAD, 64 * 3072)
    a("s_add_u32 s%d, s%d, %d", sT0, sT0, WS_KV)
    a("s_add_u32 s%d, s4, s%d", SKV, sT0)
    a("s_addc_u32 s%d, s5, 0", SKV + 1)
    a("s_mov_b32 s%d, %d", SKV + 2, 64 * 3072)
    a("s_mov_b32 s%d, 0x00020000", SKV + 3)
    a("s_add_u32 s%d, s4, %d", SQ, WS_QB)
    a("s_addc_u32 s%d, s5, 0", SQ + 1)
    a("s_mov_b32 s%d, %d", SQ + 2, 2048 * 1280)
    a("s_mov_b32 s%d, 0x00020000", SQ + 3)
    a("s_add_u32 s%d, s4, %d", SO, WS_OB)
    a("s_addc_u32 s%d, s5, 0", SO + 1)
    a("s_mov_b32 s%d, %d", SO + 2, 2048 * 1280)
    a("s_mov_b32 s%d, 0x00020000", SO + 3)
    a("v_and_b32 v%d, 31, v0", vT0)
    a("v_lshrrev_b32 v%d, 5, v0", vT1)
    a("s_lshl_b32 s%d, s%d, 8", sT0, sQB)
    a("s_lshl_b32 s%d, s%d, 6", sT1, sWQ)
    a("s_add_u32 s%d, s%d, s%d", sT0, sT0, sT1)
    a("v_add_u32 v%d, s%d, v%d", vT2, sT0, vT0)
    a("s_mov_b32 s%d, 1280", sT1)
    a("s_mul_i32 s%d, s%d, 40", sT0, sHEAD)
    a("v_mov_b32 v14, s%d", sT0)
    a("v_mad_u32_u24 v%d, v%d, s%d, v14", vT2, vT2, sT1)
    a("v_lshl_add_u32 v14, v%d, 4, v%d", vT1, vT2)
    a("v_add_u32 v15, %d, v14", 32 * 1280)
    a("v_add_u32 v1, %d, v%d", 32 * 1280, vT2)
    for qt in range(2):
        a("buffer_load_dwordx2 %s, v%d, %s, 0 offen", vr(qf(qt, 0), 2), 14 + qt, sr(SQ, 4))
        a("buffer_load_dwordx2 %s, v%d, %s, 0 offen offset:8", vr(qf(qt, 0) + 2, 2), 14 + qt, sr(SQ, 4))
        a("buffer_load_dwordx2 %s, v%d, %s, 0 offen offset:32", vr(qf(qt, 1), 2), vT2 if qt == 0 else 1, sr(SQ, 4))
    a("s_mul_i32 s%d, s%d, 98304", sT0, sKH)
    a("s_mul_i32 s%d, s%d, 3072", sT1, sWQ)
    a("s_add_u32 s%d, s%d, s%d", sT0, sT0, sT1)
    a("v_lshlrev_b32 v%d, 4, v0", vDMA)
    a("v_add_u32 v%d, s%d, v%d", vDMA, sT0, vDMA)
    a("s_mul_i32 s%d, s%d, 12288", sDST, sKH)
    a("s_add_u32 s%d, s%d, s%d", sDST, sDST, sT1)
    sDST0 = 32
    a("s_mov_b32 s%d, s%d", sDST0, sDST)
    def dma(stage_lds_off_reg=None, imm_lds=None, soff_imm=None):
        pass
    SA = 36
    LREG = 3 * STG
    a("s_mov_b32 s%d, s4", SA)
    a("s_mov_b32 s%d, s5", SA + 1)
    a("s_mov_b32 s%d, %d", SA + 2, 2048 * 3840)
    a("s_mov_b32 s%d, 0x00020000", SA + 3)
    a("s_add_u32 s%d, s4, %d", SA + 4, WS_OA)
    a("s_addc_u32 s%d, s5, 0", SA + 5)
    a("s_mov_b32 s%d, %d", SA + 6, 2048 * 1280)
    a("s_mov_b32 s%d, 0x00020000", SA + 7)
    a("s_lshl_b32 s44, s2, 3")
    a("s_mul_i32 s%d, s%d, 12288", sT0, sKH)
    a("v_lshlrev_b32 v%d, 4, v0", vK1)
    a("v_add_u32 v%d, s%d, v%d", vK1, sT0, vK1)
    a("v_lshlrev_b32 v%d, 4, v%d", vK2, vT0)
    a("v_add_u32 v%d, s%d, v%d", vK2, sT0, vK2)
    a("v_add_u32 v%d, 1024, v%d", vK2, vK2)
    a("v_min_u32 v%d, 23, v%d", vV, vT0)
    a("v_lshlrev_b32 v%d, 4, v%d", vV, vV)
    a("v_mul_u32_u24 v14, 384, v%d", vT1)
    a("v_add_u32 v%d, v%d, v14", vV, vV)
    a("v_add_u32 v%d, s%d, v%d", vV, sT0, vV)
    a("v_add_u32 v%d, 1536, v%d", vV, vV)
    sMODE = 50
    a("s_mov_b32 s%d, 0", sMODE)
    a.label("%s_restart" % name)
    a("s_lshl_b32 s45, s%d, 1", sWAVE)
    for g in range(2):
        for j in range(3):
            a("s_add_u32 m0, s%d, %d", sDST0, g * STG + j * 1024)
            a("s_mov_b32 s%d, %d", sT0, g * 12288 + j * 1024)
            a("buffer_load_dwordx4 v%d, %s, s%d offen lds", vDMA, sr(SKV, 4), sT0)
    for r in range(32):
        a("v_mov_b32 v%d, 0", OO + r)
    a("s_waitcnt vmcnt(6)")
    a("v_cmp_gt_u32 vcc, 32, v0")
    a("s_nop 1")
    for qt in range(2):
        b = qf(qt, 1)
        a("v_cndmask_b32 v%d, 0, v%d, vcc", b, b)
        a("v_cndmask_b32 v%d, 0, v%d, vcc", b + 1, b + 1)
        a("v_mov_b32 v%d, 0", b + 2)
        a("v_mov_b32 v%d, 0", b + 3)
    a("s_waitcnt vmcnt(3)")
    a("s_barrier")
    a("ds_read_b128 %s, v%d", vr(KF, 4), vK1)
    a("ds_read_b128 %s, v%d", vr(KF + 4, 4), vK2)
    a("ds_read_b128 %s, v%d offset:3072", vr(KF + 8, 4), vK1)
    a("ds_read_b128 %s, v%d offset:3072", vr(KF + 12, 4), vK2)
    for r in range(8):
        a("v_mov_b32 v%d, 0", VF + 8 + r)
        a("v_mov_b32 v%d, 0", ss(1, 1) + r)
    a("s_waitcnt lgkmcnt(2)")
    for qt in range(2):
        d = vr(ss(qt, 0), 16)
        a("v_mfma_f32_32x32x16_bf16 %s, %s, %s, %s", d, vr(KF, 4), vr(qf(qt, 0), 4), vr(oo(qt), 16))
        a("v_mfma_f32_32x32x16_bf16 %s, %s, %s, %s", d, vr(KF + 4, 4), vr(qf(qt, 1), 4), d)
    a("s_nop 15")
    a("s_nop 15")
    def tilemax_ops(S, t):
        ops = ["v_max3_f32 v%d, v%d, v%d, v%d" % (t, S, S + 1, S + 2)]
        for i in range(3, 15, 2):
            ops.append("v_max3_f32 v%d, v%d, v%d, v%d" % (t, t, S + i, S + i + 1))
        ops.append("v_max_f32 v%d, v%d, v%d" % (t, t, S + 15))
        return ops
    for qt in range(2):
        S = ss(qt, 0)
        for o in tilemax_ops(S, vT0):
            a(o)
        a("v_mov_b32 v%d, v%d", vT1, vT0)
        a("s_nop 1")
        a("v_permlane32_swap_b32 v%d, v%d", vT0, vT1)
        a("v_max_f32 v%d, v%d, v%d", vT0, vT0, vT1)
        for i in range(16):
            a("v_sub_f32 v%d, v%d, v%d", S + i, S + i, vT0)
        for i in range(16):
            a("v_sub_f32 v%d, 0, v%d", nm(qt) + i, vT0)
    a("s_mov_b32 s%d, 0", sSTG)
    a("s_add_u32 s%d, s%d, %d", sDST, sDST0, 2 * STG)
    a("s_mov_b32 s%d, %d", sSOFF, 2 * 12288)
    a("s_mov_b32 s%d, 8", sCNT)
    a("v_mov_b32 v%d, v%d", cK1, vK1)
    a("v_mov_b32 v%d, v%d", cK2, vK2)
    a("v_mov_b32 v%d, v%d", cV, vV)
    a("v_add_u32 v%d, %d, v%d", nK1, STG, vK1)
    a("v_add_u32 v%d, %d, v%d", nK2, STG, vK2)
    rare = []
    def pv(qt, sbuf, vbuf, k):
        o = vr(oo(qt), 16)
        return "v_mfma_f32_32x32x16_bf16 %s, %s, %s, %s" % (o, vr(VF + 8 * vbuf + 4 * k, 4), vr(ss(qt, sbuf) + 4 * k, 4), o)
    def qk(qt, sbuf, kbuf, k):
        d = vr(ss(qt, sbuf), 16)
        c = vr(nm(qt), 16) if k == 0 else d
        return "v_mfma_f32_32x32x16_bf16 %s, %s, %s, %s" % (d, vr(KF + 8 * kbuf + 4 * k, 4), vr(qf(qt, k), 4), c)
    a("s_mov_b64 vcc, 0")
    instr_mark(a, 0)
    a0 = a
    def emit_loop(fast, sfx):
        def a(s, *args):
            if s is not None:
                a0(s, *args)
        a.label = a0.label
        a.comment = a0.comment
        a.label("%s_loop%s" % (name, sfx))
        for tt in range(4):
            cur = tt & 1
            nxt = cur ^ 1
            a.comment("---- tile %d" % tt)
            if tt == 2:
                a("s_waitcnt vmcnt(0)")
                a("s_barrier")
                for j in range(3):
                    a("s_add_u32 m0, s%d, %d", sDST, j * 1024)
                    a("s_add_u32 s%d, s%d, %d", sT0, sSOFF, j * 1024)
                    a("buffer_load_dwordx4 v%d, %s, s%d offen lds", vDMA, sr(SKV, 4), sT0)
                a("s_cmp_lt_u32 s%d, 4", sCNT)
                a("s_cbranch_scc1 %s_nostage%s", name, sfx)
                for j in range(2):
                    a("s_add_u32 s46, s45, %d", j)
                    a("s_min_u32 s46, s46, 64")
                    a("s_lshl_b32 s46, s46, 10")
                    a("v_lshl_add_u32 v%d, v0, 4, s46", vT0)
                    a("s_mov_b32 s47, 52429")
                    a("v_lshrrev_b32 v%d, 9, v%d", vT1, vT0)
                    a("v_mul_u32_u24 v%d, s47, v%d", vT1, vT1)
                    a("v_lshrrev_b32 v%d, 18, v%d", vT1, vT1)
                    a("v_mul_u32_u24 v%d, 2560, v%d", vT2, vT1)
                    a("v_sub_u32 v%d, v%d, v%d", vT2, vT0, vT2)
                    a("v_add_u32 v%d, 1280, v%d", vT2, vT2)
                    a("v_add_u32 v%d, s44, v%d", vT1, vT1)
                    a("v_subrev_u32 v%d, 14, v%d", vT1, vT1)
                    a("v_max_i32 v%d, 0, v%d", vT1, vT1)
                    a("v_subrev_u32 v14, 56320, v%d", vT0)
                    a("v_lshrrev_b32 v15, 8, v14")
                    a("v_mul_u32_u24 v15, s47, v15")
                    a("v_lshrrev_b32 v15, 18, v15")
                    a("v_mul_u32_u24 v1, 1280, v15")
                    a("v_sub_u32 v14, v14, v1")
                    a("v_add_u32 v15, s44, v15")
                    a("s_mov_b32 s47, 56320")
                    a("v_cmp_le_u32 s[48:49], s47, v%d", vT0)
                    a("s_add_u32 m0, s46, %d", LREG)
                    a("s_nop 1")
                    a("v_cndmask_b32 v%d, v%d, v15, s[48:49]", vT1, vT1)
                    a("v_cndmask_b32 v%d, v%d, v14, s[48:49]", vT2, vT2)
                    a("s_mov_b32 s47, 3840")
                    a("v_mad_u32_u24 v%d, v%d, s47, v%d", vT0, vT1, vT2)
                    a("buffer_load_dwordx4 v%d, %s, 0 offen lds", vT0, sr(SA, 4))
                a("s_add_u32 s45, s45, 16")
                a.label("%s_nostage%s" % (name, sfx))
            for qt in range(2):
                S = ss(qt, cur)
                if qt == 0:
                    a("ds_read_b128 %s, v%d offset:%d", vr(VF + 8 * cur, 4), cV, tt * 3072)
                    a("ds_read_b128 %s, v%d offset:%d", vr(VF + 8 * cur + 4, 4), cV, tt * 3072 + 768)
                    m = [pv(1, nxt, nxt, 0), pv(1, nxt, nxt, 1), qk(0, nxt, nxt, 0), qk(0, nxt, nxt, 1)]
                else:
                    if tt < 2:
                        a("ds_read_b128 %s, v%d offset:%d", vr(KF + 8 * cur, 4), cK1, (tt + 2) * 3072)
                        a("ds_read_b128 %s, v%d offset:%d", vr(KF + 8 * cur + 4, 4), cK2, (tt + 2) * 3072)
                    else:
                        a("ds_read_b128 %s, v%d offset:%d", vr(KF + 8 * cur, 4), nK1, (tt - 2) * 3072)
                        a("ds_read_b128 %s, v%d offset:%d", vr(KF + 8 * cur + 4, 4), nK2, (tt - 2) * 3072)
                    m = [pv(0, cur, cur, 0), pv(0, cur, cur, 1), qk(1, nxt, nxt, 0), qk(1, nxt, nxt, 1)]
                if qt == 0:
                    mx = tilemax_ops(ss(1, cur), vMX + 1)
                    cmpop = "v_cmp_lt_f32 vcc, s%d, v%d" % (sTH, vMX + 1)
                else:
                    mx = tilemax_ops(ss(0, nxt), vMX + 0)
                    cmpop = "v_cmp_lt_f32 vcc, s%d, v%d" % (sTH, vMX + 0)
                lr = "%s_rare_%d_%d" % (name, tt, qt)
                lb = "%s_back_%d_%d" % (name, tt, qt)
                if fast:
                    mx = [None] * 8
                    cmpop = None
                else:
                    a("s_cbranch_vccnz %s", lr)
                    a.label(lb)
                    rare.append((lr, lb, qt, cur, nxt))
                e = lambda i: "v_exp_f32 v%d, v%d" % (S + i, S + i)
                cv = lambda k: "v_cvt_pk_bf16_f32 v%d, v%d, v%d" % (S + k, S + 2 * k, S + 2 * k + 1)
                a(e(0)); a(e(1))
                if qt == 1:
                    a("s_waitcnt lgkmcnt(2)")
                a(m[0])
                a(e(2)); a(mx[0]); a(e(3)); a(mx[1])
                a(e(4)); a(cv(0))
                a(m[1])
                a(e(5)); a(mx[2]); a(e(6)); a(cv(1)); a(e(7)); a(mx[3])
                if qt == 0:
                    a("s_waitcnt lgkmcnt(2)")
                a(m[2])
                a(e(8)); a(cv(2)); a(e(9)); a(mx[4]); a(e(10)); a(cv(3)); a(e(11)); a(mx[5])
                a(m[3])
                a(e(12)); a(cv(4)); a(e(13)); a(mx[6]); a(e(14)); a(cv(5)); a(e(15)); a(mx[7])
                a(cv(6)); a(cmpop); a(cv(7))
        a("s_add_u32 s%d, s%d, %d", sSTG, sSTG, STG)
        a("s_cmp_eq_u32 s%d, %d", sSTG, 3 * STG)
        a("s_cselect_b32 s%d, 0, s%d", sSTG, sSTG)
        a("s_add_u32 s%d, s%d, %d", sT0, sSTG, STG)
        a("s_cmp_eq_u32 s%d, %d", sT0, 3 * STG)
        a("s_cselect_b32 s%d, 0, s%d", sT0, sT0)
        a("s_add_u32 s%d, s%d, %d", sT1, sT0, STG)
        a("s_cmp_eq_u32 s%d, %d", sT1, 3 * STG)
        a("s_cselect_b32 s%d, 0, s%d", sT1, sT1)
        a("s_add_u32 s%d, s%d, s%d", sDST, sDST0, sT1)
        a("s_add_u32 s%d, s%d, 12288", sSOFF, sSOFF)
        a("v_add_u32 v%d, s%d, v%d", cK1, sSTG, vK1)
        a("v_add_u32 v%d, s%d, v%d", cK2, sSTG, vK2)
        a("v_add_u32 v%d, s%d, v%d", cV, sSTG, vV)
        a("v_add_u32 v%d, s%d, v%d", nK1, sT0, vK1)
        a("v_add_u32 v%d, s%d, v%d", nK2, sT0, vK2)
        a("s_sub_u32 s%d, s%d, 1", sCNT, sCNT)
        a("s_cmp_lg_u32 s%d, 0", sCNT)
        a("s_cbranch_scc1 %s_loop%s", name, sfx)

    a("s_cmp_lg_u32 s%d, 0", sMODE)
    a("s_cbranch_scc1 %s_safe", name)
    emit_loop(True, "f")
    a("s_branch %s_join", name)
    a.label("%s_safe" % name)
    emit_loop(False, "s")
    a.label("%s_join" % name)
    a(pv(1, 1, 1, 0))
    a(pv(1, 1, 1, 1))
    instr_mark(a, 1)
    a("s_waitcnt vmcnt(0) lgkmcnt(0)")
    a("s_nop 15")
    a("s_nop 15")
    FLAG = 3 * STG + 66560
    a("s_mov_b32 s46, 0x%08x", f32bits(2.0 ** 100))
    a("v_mov_b32 v%d, 0", vT0)
    for qt in range(2):
        for r in range(0, 8, 2):
            a("v_max3_f32 v%d, |v%d|, |v%d|, v%d", vT0, oo(qt) + r, oo(qt) + r + 1, vT0)
        a("v_cmp_nlt_f32 vcc, |v%d|, s46", oo(qt) + 8)
        a("s_mov_b64 s[%d:%d], vcc", 52 + 2 * qt, 53 + 2 * qt)
    a("v_cmp_nlt_f32 vcc, v%d, s46", vT0)
    a("v_cmp_u_f32 s[56:57], v%d, v%d", oo(0), oo(1))
    a("s_or_b64 vcc, vcc, s[52:53]")
    a("s_or_b64 vcc, vcc, s[54:55]")
    a("s_or_b64 vcc, vcc, s[56:57]")
    a("s_cselect_b32 s46, 1, 0")
    a("s_lshl_b32 s47, s%d, 2", sWAVE)
    a("s_add_u32 s47, s47, %d", FLAG)
    a("v_mov_b32 v%d, s47", vT1)
    a("v_mov_b32 v%d, s46", vT2)
    a("ds_write_b32 v%d, v%d", vT1, vT2)
    a("s_waitcnt lgkmcnt(0)")
    a("s_barrier")
    a("s_cmp_lg_u32 s%d, 0", sMODE)
    a("s_cbranch_scc1 %s_novote", name)
    a("v_and_b32 v%d, 7, v0", vT1)
    a("v_lshlrev_b32 v%d, 2, v%d", vT1, vT1)
    a("v_add_u32 v%d, %d, v%d", vT1, FLAG, vT1)
    a("ds_read_b32 v%d, v%d", vT2, vT1)
    a("s_waitcnt lgkmcnt(0)")
    a("v_cmp_ne_u32 vcc, 0, v%d", vT2)
    a("s_cbranch_vccz %s_novote", name)
    a("s_mov_b32 s%d, 1", sMODE)
    a("s_barrier")
    a("s_branch %s_restart", name)
    a.label("%s_novote" % name)
    a("s_mul_i32 s%d, s%d, %d", sT0, sWQ, 2 * 13 * 256)
    a("v_lshlrev_b32 v%d, 2, v0", vT2)
    a("v_add_u32 v%d, s%d, v%d", vT2, sT0, vT2)
    a("s_cmp_eq_u32 s%d, 0", sKH)
    a("s_cbranch_scc1 %s_comb0", name)
    for qt in range(2):
        for r in range(12):
            a("ds_write_b32 v%d, v%d offset:%d", vT2, oo(qt) + r, (qt * 13 + r) * 256)
        a("ds_write_b32 v%d, v%d offset:%d", vT2, nm(qt), (qt * 13 + 12) * 256)
    a("s_waitcnt lgkmcnt(0)")
    a("s_barrier")
    a("s_branch %s_local", name)
    a.label("%s_comb0" % name)
    a("s_barrier")
    X = SS
    for qt in range(2):
        for r in range(13):
            a("ds_read_b32 v%d, v%d offset:%d", X + qt * 16 + r, vT2, (qt * 13 + r) * 256)
    a("v_and_b32 v%d, 31, v0", vT0)
    a("v_lshrrev_b32 v%d, 5, v0", vT1)
    a("s_lshl_b32 s%d, s%d, 8", sT0, sQB)
    a("s_lshl_b32 s%d, s%d, 6", sT1, sWQ)
    a("s_add_u32 s%d, s%d, s%d", sT0, sT0, sT1)
    a("v_add_u32 v%d, s%d, v%d", vT0, sT0, vT0)
    a("s_mov_b32 s%d, 1280", sT1)
    a("s_mul_i32 s%d, s%d, 40", sT0, sHEAD)
    a("v_lshlrev_b32 v%d, 3, v%d", vT1, vT1)
    a("v_add_u32 v%d, s%d, v%d", vT1, sT0, vT1)
    a("v_mad_u32_u24 v14, v%d, s%d, v%d", vT0, sT1, vT1)
    a("v_add_u32 v15, %d, v14", 32 * 1280)
    a("s_waitcnt lgkmcnt(0)")
    for qt in range(2):
        x = X + qt * 16
        o = oo(qt)
        a("v_min_f32 v%d, v%d, v%d", vT0, nm(qt), x + 12)
        a("v_sub_f32 v%d, v%d, v%d", vT1, vT0, nm(qt))
        a("v_sub_f32 v%d, v%d, v%d", vT2, vT0, x + 12)
        a("v_exp_f32 v%d, v%d", vT1, vT1)
        a("v_exp_f32 v%d, v%d", vT2, vT2)
        a("s_nop 0")
        for r in range(12):
            a("v_mul_f32 v%d, v%d, v%d", o + r, o + r, vT1)
            a("v_fmac_f32 v%d, v%d, v%d", o + r, x + r, vT2)
        a("v_mov_b32 v%d, v%d", vT0, o + 8)
        a("v_mov_b32 v%d, v%d", vT1, o + 8)
        a("s_nop 1")
        a("v_permlane32_swap_b32 v%d, v%d", vT0, vT1)
        a("v_rcp_f32 v%d, v%d", vT1, vT1)
        a("s_nop 0")
        for r in range(12):
            a("v_mul_f32 v%d, v%d, v%d", o + r, o + r, vT1)
        for j in range(3):
            a("v_cvt_pk_bf16_f32 v%d, v%d, v%d", o + 4 * j, o + 4 * j, o + 4 * j + 1)
            a("v_cvt_pk_bf16_f32 v%d, v%d, v%d", o + 4 * j + 1, o + 4 * j + 2, o + 4 * j + 3)
        for j in range(2):
            a("buffer_store_dwordx2 %s, v%d, %s, 0 offen offset:%d", vr(o + 4 * j, 2), 14 + qt, sr(SO, 4), 16 * j)
    a("v_cmp_gt_u32 vcc, 32, v0")
    a("s_and_saveexec_b64 s[34:35], vcc")
    a("s_cbranch_execz %s_st_skip", name)
    for qt in range(2):
        a("buffer_store_dwordx2 %s, v%d, %s, 0 offen offset:%d", vr(oo(qt) + 8, 2), 14 + qt, sr(SO, 4), 32)
    a.label("%s_st_skip" % name)
    a("s_mov_b64 exec, s[34:35]")
    a("s_nop 1")
    a.label("%s_local" % name)
    LQ, LK, LV = 64, 70, 118
    LL, LO = 32, 48
    a("v_lshrrev_b32 v28, 1, v0")
    a("v_mul_u32_u24 v28, 40, v28")
    a("v_and_b32 v30, 1, v0")
    a("v_mad_u32_u24 v30, v30, 24, v28")
    sc = (20.0 ** -0.5) * math.log2(math.e)
    a("s_add_u32 s46, s44, s%d", sWAVE)
    a("s_mul_i32 s47, s%d, 1280", sWAVE)
    a("s_add_u32 s47, s47, %d", LREG + 56320)
    a("v_add_u32 v29, s47, v30")
    for i in range(3):
        a("ds_read_b64 %s, v29 offset:%d", vr(LQ + 2 * i, 2), 8 * i)
    a("s_mul_i32 s47, s%d, 2560", sWAVE)
    a("s_add_u32 s47, s47, %d", LREG)
    a("v_add_u32 v29, s47, v30")
    for w in range(8):
        for i in range(3):
            a("ds_read_b64 %s, v29 offset:%d", vr(LK + 6 * w + 2 * i, 2), (14 - 2 * w) * 2560 + 8 * i)
        if w % 4 == 3:
            a("s_waitcnt lgkmcnt(3)")
    for w in range(8):
        a("v_mov_b32 v%d, 0", LL + w)
    for d in range(12):
        a("v_mov_b32 v%d, 0", LO + d)
    a("v_and_b32 v60, 1, v0")
    a("v_cmp_eq_u32 vcc, 0, v60")
    a("s_waitcnt lgkmcnt(0)")
    a("v_cndmask_b32 v%d, 0, v%d, vcc", LQ + 4, LQ + 4)
    a("v_cndmask_b32 v%d, 0, v%d, vcc", LQ + 5, LQ + 5)
    for w in range(8):
        for i in range(3):
            a("ds_read_b64 %s, v29 offset:%d", vr(LV + 6 * w + 2 * i, 2), (14 - 2 * w) * 2560 + 1280 + 8 * i)
        if w % 4 == 3:
            a("s_waitcnt lgkmcnt(3)")
    for i in range(6):
        for w in range(8):
            a("v_dot2_f32_bf16 v%d, v%d, v%d, v%d", LL + w, LQ + i, LK + 6 * w + i, LL + w)
    a("s_nop 3")
    for w in range(8):
        a("v_add_f32_dpp v%d, v%d, v%d quad_perm:[1,0,3,2] row_mask:0xf bank_mask:0xf", 40 + w, LL + w, LL + w)
    a("s_mov_b32 s47, 0x%08x", f32bits(sc))
    a("v_mov_b32 v29, 0x%08x", f32bits(-1e30))
    for w in range(8):
        a("v_mul_f32 v%d, s47, v%d", LL + w, 40 + w)
    for w in range(1, 8):
        a("s_cmp_ge_u32 s46, %d", 2 * w)
        a("s_cbranch_scc1 %s_lv_%d", name, w)
        a("v_mov_b32 v%d, v29", LL + w)
        a.label("%s_lv_%d" % (name, w))
    a("v_max3_f32 v60, v%d, v%d, v%d", LL, LL + 1, LL + 2)
    a("v_max3_f32 v60, v60, v%d, v%d", LL + 3, LL + 4)
    a("v_max3_f32 v60, v60, v%d, v%d", LL + 5, LL + 6)
    a("v_max_f32 v60, v60, v%d", LL + 7)
    for w in range(8):
        a("v_sub_f32 v%d, v%d, v60", LL + w, LL + w)
    for w in range(8):
        a("v_exp_f32 v%d, v%d", LL + w, LL + w)
    a("s_nop 0")
    a("v_add_f32 v61, v%d, v%d", LL, LL + 1)
    for w in range(2, 8):
        a("v_add_f32 v61, v61, v%d", LL + w)
    a("v_rcp_f32 v61, v61")
    a("s_nop 0")
    for w in range(8):
        a("v_mul_f32 v%d, v%d, v61", LL + w, LL + w)
    a("s_waitcnt lgkmcnt(0)")
    for w in range(8):
        for i in range(6):
            src = LV + 6 * w + i
            a("v_lshlrev_b32 v62, 16, v%d", src)
            a("v_and_b32 v63, 0xffff0000, v%d", src)
            a("v_fmac_f32 v%d, v%d, v62", LO + 2 * i, LL + w)
            a("v_fmac_f32 v%d, v%d, v63", LO + 2 * i + 1, LL + w)
    for i in range(6):
        a("v_cvt_pk_bf16_f32 v%d, v%d, v%d", 40 + i, LO + 2 * i, LO + 2 * i + 1)
    a("s_mul_i32 s47, s46, 1280")
    a("buffer_store_dwordx4 v[40:43], v30, %s, s47 offen", sr(SA + 4, 4))
    a("s_and_b64 exec, exec, vcc")
    a("buffer_store_dwordx2 v[44:45], v30, %s, s47 offen offset:16", sr(SA + 4, 4))
    a.label("%s_done" % name)
    instr_end(a, 5)
    a.label("%s_done2" % name)
    a("s_endpgm")
    for (lr, lb, qt, cur, nxt) in rare:
        a.label(lr)
        a("s_nop 15")
        a("s_nop 7")
        a("v_mov_b32 v%d, v%d", vT0, vMX + qt)
        a("v_mov_b32 v%d, v%d", vT1, vMX + qt)
        a("s_nop 1")
        a("v_permlane32_swap_b32 v%d, v%d", vT0, vT1)
        a("v_max3_f32 v%d, v%d, v%d, 0", vT0, vT0, vT1)
        a("v_exp_f32 v%d, -v%d", vT1, vT0)
        for i in range(16):
            a("v_sub_f32 v%d, v%d, v%d", ss(qt, cur) + i, ss(qt, cur) + i, vT0)
        for i in range(16):
            a("v_sub_f32 v%d, v%d, v%d", nm(qt) + i, nm(qt) + i, vT0)
        for i in range(16):
            a("v_mul_f32 v%d, v%d, v%d", oo(qt) + i, oo(qt) + i, vT1)
        a("s_nop 1")
        a("s_branch %s", lb)
    return name, VEND, 3 * STG + 66560 + 64, 512
```

```python
from common import *

def gen_oproj2(a):
    name = "oproj_kernel"
    NST, KST = 5, 10
    AB, BB = 8192, 64 * 320
    STAGE = AB + BB
    SA, SW, SO = 12, 16, 20
    sW, sMT, sNT, sBR, sLA, sLB, sSOFF, sT0, sT1, sT2 = 24, 25, 26, 27, 28, 29, 30, 31, 32, 33
    vDA, vDB, vRA, vRB = 8, 10, 16, 36
    vFA, vFB, vACC = 44, 60, 68
    VEND = 100
    kernel_header(a, name)
    a("s_cmp_ge_u32 s2, 256")
    a("s_cbranch_scc1 %s_done2", name)
    instr_begin(a)
    a("s_load_dwordx2 s[4:5], s[0:1], 16")
    a("s_load_dwordx2 s[6:7], s[0:1], 40")
    a("s_load_dwordx2 s[8:9], s[0:1], 48")
    a("s_load_dwordx2 s[36:37], s[0:1], 64")
    a("v_lshrrev_b32 v1, 6, v0")
    a("v_and_b32 v2, 63, v0")
    a("s_and_b32 s%d, s2, 7", sT0)
    a("v_readfirstlane_b32 s%d, v1", sW)
    a("s_lshr_b32 s%d, s2, 3", sT1)
    a("s_and_b32 s%d, s%d, 1", sBR, sT0)
    a("s_lshr_b32 s%d, s%d, 1", sMT, sT0)
    a("s_lshl_b32 s%d, s%d, 3", sMT, sMT)
    a("s_lshr_b32 s%d, s%d, 2", sT2, sT1)
    a("s_add_u32 s%d, s%d, s%d", sMT, sMT, sT2)
    a("s_and_b32 s%d, s%d, 3", sNT, sT1)
    a("s_min_u32 s%d, s%d, 3", sT0, sW)
    a("s_lshl_b32 s%d, s%d, 11", sLA, sT0)
    a("s_lshl_b32 s%d, s%d, 4", sT0, sT0)
    a("v_lshrrev_b32 v3, 3, v2")
    a("v_add_u32 v3, s%d, v3", sT0)
    a("v_and_b32 v4, 7, v2")
    a("s_mov_b32 s%d, 1280", sT1)
    for j in range(2):
        a("v_add_u32 v5, %d, v3", 8 * j)
        a("v_bfe_u32 v6, v5, 1, 3")
        a("v_xor_b32 v6, v6, v4")
        a("v_lshlrev_b32 v6, 4, v6")
        a("v_mad_u32_u24 v%d, v5, s%d, v6", vDA + j, sT1)
    a("s_lshl_b32 s%d, s%d, 12", sLB, sW)
    a("s_add_u32 s%d, s%d, %d", sLB, sLB, AB)
    a("s_lshl_b32 s%d, s%d, 8", sT0, sW)
    a("v_add_u32 v3, s%d, v2", sT0)
    a("s_mov_b32 s%d, 3277", sT2)
    for j in range(4):
        a("v_add_u32 v4, %d, v3", 64 * j)
        a("v_mul_u32_u24 v5, s%d, v4", sT2)
        a("v_lshrrev_b32 v5, 16, v5")
        a("v_mul_u32_u24 v6, 20, v5")
        a("v_sub_u32 v6, v4, v6")
        a("v_lshlrev_b32 v6, 4, v6")
        a("v_mad_u32_u24 v%d, v5, s%d, v6", vDB + j, sT1)
    a("s_waitcnt lgkmcnt(0)")
    a("s_cmp_eq_u32 s%d, 0", sBR)
    a("s_cselect_b64 s[6:7], s[4:5], s[6:7]")
    a("s_mov_b32 s%d, %d", sT1, WS_OB)
    a("s_cselect_b32 s%d, %d, s%d", sT1, WS_OA, sT1)
    a("s_mul_i32 s%d, s%d, %d", sT0, sMT, 64 * 1280)
    a("s_add_u32 s%d, s%d, s%d", sT0, sT0, sT1)
    a("s_add_u32 s%d, s36, s%d", SA, sT0)
    a("s_addc_u32 s%d, s37, 0", SA + 1)
    a("s_mov_b32 s%d, %d", SA + 2, 64 * 1280)
    a("s_mov_b32 s%d, 0x00020000", SA + 3)
    a("s_mul_i32 s%d, s%d, 320", sT0, sNT)
    a("s_add_u32 s%d, s6, s%d", SW, sT0)
    a("s_addc_u32 s%d, s7, 0", SW + 1)
    a("s_sub_u32 s%d, %d, s%d", SW + 2, 640 * 1280, sT0)
    a("s_mov_b32 s%d, 0x00020000", SW + 3)
    a("s_mov_b32 s%d, s8", SO)
    a("s_mov_b32 s%d, s9", SO + 1)
    a("s_mov_b32 s%d, %d", SO + 2, 2048 * 2560)
    a("s_mov_b32 s%d, 0x00020000", SO + 3)
    def dma(k):
        st = k % NST
        a("s_mov_b32 s%d, %d", sSOFF, k * 128)
        for j in range(2):
            a("s_add_u32 m0, s%d, %d", sLA, st * STAGE + j * 1024)
            a("s_nop 0")
            a("buffer_load_dwordx4 v%d, %s, s%d offen lds", vDA + j, sr(SA, 4), sSOFF)
        a("s_mov_b32 s%d, %d", sSOFF, k * 64 * 1280)
        for j in range(4):
            a("s_add_u32 m0, s%d, %d", sLB, st * STAGE + j * 1024)
            a("s_nop 0")
            a("buffer_load_dwordx4 v%d, %s, s%d offen lds", vDB + j, sr(SW, 4), sSOFF)
    for k in range(4):
        dma(k)
    a("v_and_b32 v3, 31, v2")
    a("v_lshrrev_b32 v4, 5, v2")
    a("v_bfe_u32 v5, v3, 1, 3")
    a("v_lshlrev_b32 v3, 7, v3")
    for ks in range(4):
        a("v_add_u32 v6, %d, v4", 2 * ks)
        a("v_xor_b32 v6, v6, v5")
        a("v_lshl_add_u32 v%d, v6, 4, v3", vRA + ks)
        for st in range(1, NST):
            a("v_add_u32 v%d, %d, v%d", vRA + 4 * st + ks, st * STAGE, vRA + ks)
    a("v_bfe_u32 v3, v2, 2, 2")
    a("v_and_b32 v4, 3, v2")
    a("v_bfe_u32 v5, v2, 4, 1")
    a("v_lshrrev_b32 v6, 5, v2")
    a("v_lshl_add_u32 v6, v6, 3, v3")
    a("v_mul_u32_u24 v6, 320, v6")
    a("v_lshlrev_b32 v4, 3, v4")
    a("v_lshl_add_u32 v4, v5, 5, v4")
    a("s_lshl_b32 s%d, s%d, 6", sT0, sW)
    a("v_add3_u32 v6, v6, v4, s%d", sT0)
    a("v_add_u32 v%d, %d, v6", vRB, AB)
    for st in range(1, NST):
        a("v_add_u32 v%d, %d, v%d", vRB + st, st * STAGE, vRB)
    for r in range(32):
        a("v_mov_b32 v%d, 0", vACC + r)
    def reads(st, ks, buf):
        for mt in range(2):
            a("ds_read_b128 %s, v%d offset:%d", vr(vFA + (buf * 2 + mt) * 4, 4), vRA + 4 * st + ks, mt * 4096)
        for j in range(2):
            a("ds_read_b64_tr_b16 %s, v%d offset:%d", vr(vFB + buf * 4 + 2 * j, 2), vRB + st, (16 * ks + 4 * j) * 320)
    for i in range(KST):
        st = i % NST
        a("s_waitcnt vmcnt(%d)", 6 * min(3, KST - 1 - i))
        a("s_barrier")
        if i == 0:
            instr_mark(a, 0)
        reads(st, 0, 0)
        if i + 4 < KST:
            dma(i + 4)
        for ks in range(4):
            buf = ks & 1
            if ks < 3:
                reads(st, ks + 1, buf ^ 1)
                a("s_waitcnt lgkmcnt(4)")
            else:
                a("s_waitcnt lgkmcnt(0)")
            for mt in range(2):
                d = vr(vACC + 16 * mt, 16)
                a("v_mfma_f32_32x32x16_bf16 %s, %s, %s, %s", d, vr(vFB + buf * 4, 4), vr(vFA + (buf * 2 + mt) * 4, 4), d)
    a("s_nop 15")
    a("s_nop 15")
    instr_mark(a, 1)
    CST = 336
    a("s_barrier")
    a("v_and_b32 v3, 31, v2")
    a("v_mul_u32_u24 v6, %d, v3", CST)
    a("v_lshrrev_b32 v7, 5, v2")
    a("v_lshlrev_b32 v7, 3, v7")
    a("s_lshl_b32 s%d, s%d, 6", sT0, sW)
    a("v_add3_u32 v6, v6, v7, s%d", sT0)
    for mt in range(2):
        for j in range(4):
            r = vACC + 16 * mt + 4 * j
            a("v_cvt_pk_bf16_f32 v%d, v%d, v%d", r, r, r + 1)
            a("v_cvt_pk_bf16_f32 v%d, v%d, v%d", r + 1, r + 2, r + 3)
            a("ds_write_b64 v6, %s offset:%d", vr(r, 2), mt * 32 * CST + 16 * j)
    a("s_waitcnt lgkmcnt(0)")
    a("s_barrier")
    a("s_lshl_b32 s%d, s%d, 8", sT0, sW)
    a("v_add_u32 v3, s%d, v2", sT0)
    a("s_lshl_b32 s%d, s%d, 6", sT1, sMT)
    a("s_mul_i32 s34, s%d, 320", sNT)
    a("s_mul_i32 s35, s%d, 1280", sBR)
    a("s_add_u32 s34, s34, s35")
    a("s_mov_b32 s35, 2560")
    for j in range(4):
        a("v_add_u32 v4, %d, v3", 64 * j)
        a("v_mul_u32_u24 v5, s%d, v4", sT2)
        a("v_lshrrev_b32 v5, 16, v5")
        a("v_mul_u32_u24 v6, 20, v5")
        a("v_sub_u32 v6, v4, v6")
        a("v_lshlrev_b32 v6, 4, v6")
        a("v_mul_u32_u24 v7, %d, v5", CST)
        a("v_add_u32 v7, v7, v6")
        a("ds_read_b128 %s, v7", vr(vACC + 4 * j, 4))
        a("v_add_u32 v5, s%d, v5", sT1)
        a("v_mad_u32_u24 v%d, v5, s35, v6", vDB + j)
        a("v_add_u32 v%d, s34, v%d", vDB + j, vDB + j)
    for j in range(4):
        a("s_waitcnt lgkmcnt(%d)", 3 - j)
        a("buffer_store_dwordx4 %s, v%d, %s, 0 offen", vr(vACC + 4 * j, 4), vDB + j, sr(SO, 4))
    a.label("%s_done" % name)
    instr_end(a, 5)
    a.label("%s_done2" % name)
    a("s_endpgm")
    return name, VEND, NST * STAGE, 320
```

```python
from common import *
import struct, math

def f32bits(x):
    return struct.unpack('<I', struct.pack('<f', x))[0]

def gen_local(a):
    name = "local_kernel"
    kernel_header(a, name)
    a("s_cmp_ge_u32 s2, 256")
    a("s_cbranch_scc1 %s_done2", name)
    instr_begin(a)
    a("s_load_dwordx2 s[4:5], s[0:1], 64")
    a("v_and_b32 v1, 31, v0")
    a("v_lshrrev_b32 v2, 5, v0")
    a("s_lshl_b32 s3, s2, 3")
    a("v_add_u32 v2, s3, v2")
    a("v_mul_u32_u24 v1, 40, v1")
    a("s_waitcnt lgkmcnt(0)")
    a("s_mov_b32 s8, s4")
    a("s_mov_b32 s9, s5")
    a("s_mov_b32 s10, %d", 2048 * 3840)
    a("s_mov_b32 s11, 0x00020000")
    a("s_add_u32 s12, s4, %d", WS_OA)
    a("s_addc_u32 s13, s5, 0")
    a("s_mov_b32 s14, %d", 2048 * 1280)
    a("s_mov_b32 s15, 0x00020000")
    a("s_mov_b32 s16, 3840")
    Q, K, V = 16, 26, 106
    a("v_mad_u32_u24 v3, v2, s16, v1")
    for i in range(5):
        a("buffer_load_dwordx2 %s, v3, s[8:11], 0 offen offset:%d", vr(Q + 2 * i, 2), 8 * i)
    for w in range(8):
        a("v_subrev_u32 v4, %d, v2", 2 * w)
        a("v_max_i32 v4, 0, v4")
        a("v_mad_u32_u24 v%d, v4, s16, v1", 5 + w)
    for w in range(8):
        for i in range(5):
            a("buffer_load_dwordx2 %s, v%d, s[8:11], 0 offen offset:%d", vr(K + 10 * w + 2 * i, 2), 5 + w, 1280 + 8 * i)
    for w in range(8):
        for i in range(5):
            a("buffer_load_dwordx2 %s, v%d, s[8:11], 0 offen offset:%d", vr(V + 10 * w + 2 * i, 2), 5 + w, 2560 + 8 * i)
    L = 186
    a("s_waitcnt vmcnt(40)")
    for w in range(8):
        a("v_mov_b32 v%d, 0", L + w)
    for i in range(10):
        for w in range(8):
            a("v_dot2_f32_bf16 v%d, v%d, v%d, v%d", L + w, Q + i, K + 10 * w + i, L + w)
    a("s_nop 3")
    sc = (20.0 ** -0.5) * math.log2(math.e)
    a("s_mov_b32 s17, 0x%08x", f32bits(sc))
    a("v_mov_b32 v13, 0x%08x", f32bits(-1e30))
    for w in range(8):
        a("v_mul_f32 v%d, s17, v%d", L + w, L + w)
    for w in range(1, 8):
        a("v_cmp_le_u32 vcc, %d, v2", 2 * w)
        a("s_nop 1")
        a("v_cndmask_b32 v%d, v13, v%d, vcc", L + w, L + w)
    a("v_max3_f32 v14, v%d, v%d, v%d", L, L + 1, L + 2)
    a("v_max3_f32 v14, v14, v%d, v%d", L + 3, L + 4)
    a("v_max3_f32 v14, v14, v%d, v%d", L + 5, L + 6)
    a("v_max_f32 v14, v14, v%d", L + 7)
    for w in range(8):
        a("v_sub_f32 v%d, v%d, v14", L + w, L + w)
    for w in range(8):
        a("v_exp_f32 v%d, v%d", L + w, L + w)
    a("s_nop 0")
    a("v_add_f32 v15, v%d, v%d", L, L + 1)
    for w in range(2, 8):
        a("v_add_f32 v15, v15, v%d", L + w)
    a("v_rcp_f32 v15, v15")
    a("s_nop 0")
    for w in range(8):
        a("v_mul_f32 v%d, v%d, v15", L + w, L + w)
    O = 196
    for d in range(20):
        a("v_mov_b32 v%d, 0", O + d)
    a("s_waitcnt vmcnt(0)")
    for w in range(8):
        for i in range(10):
            src = V + 10 * w + i
            a("v_lshlrev_b32 v4, 16, v%d", src)
            a("v_and_b32 v5, 0xffff0000, v%d", src)
            a("v_fmac_f32 v%d, v%d, v4", O + 2 * i, L + w)
            a("v_fmac_f32 v%d, v%d, v5", O + 2 * i + 1, L + w)
    for i in range(10):
        a("v_cvt_pk_bf16_f32 v%d, v%d, v%d", Q + i, O + 2 * i, O + 2 * i + 1)
    a("s_mov_b32 s16, 1280")
    a("v_mad_u32_u24 v3, v2, s16, v1")
    for i in range(5):
        a("buffer_store_dwordx2 %s, v3, s[12:15], 0 offen offset:%d", vr(Q + 2 * i, 2), 8 * i)
    a.label("%s_done" % name)
    instr_end(a, 5)
    a.label("%s_done2" % name)
    a("s_endpgm")
    return name, 216, 0, 256

STG = 24576
THRESH = 60.0

def gen_attn(a):
    name = "attn_kernel"
    kernel_header(a, name)
    SKV, SQ, SO = 8, 12, 16
    sWAVE, sWQ, sKH, sHEAD, sQB = 20, 21, 22, 23, 24
    sSTG = 25
    sDST = 26
    sSOFF = 27
    sCNT = 28
    sTH = 29
    sT0, sT1 = 30, 31
    vDMA = 2
    vK1, vK2, vV = 3, 4, 5
    cK1, cK2, cV = 6, 7, 8
    nK1, nK2 = 9, 10
    vT0, vT1, vT2 = 11, 12, 13
    vMX = 192
    QF = 16
    KF = 32
    VF = 48
    NM = 64
    OO = 96
    SS = 128
    VEND = 196
    def qf(qt, step): return QF + (qt * 2 + step) * 4
    def nm(qt): return NM + 16 * qt
    def oo(qt): return OO + 16 * qt
    def ss(qt, buf): return SS + (qt * 2 + buf) * 16

    a("s_cmp_ge_u32 s2, 256")
    a("s_cbranch_scc1 %s_done2", name)
    instr_begin(a)
    a("s_load_dwordx2 s[4:5], s[0:1], 64")
    a("v_lshrrev_b32 v1, 6, v0")
    a("v_and_b32 v0, 63, v0")
    a("s_and_b32 s%d, s2, 7", sT0)
    a("v_readfirstlane_b32 s%d, v1", sWAVE)
    a("s_lshr_b32 s%d, s2, 3", sT1)
    a("s_lshl_b32 s%d, s%d, 2", sHEAD, sT0)
    a("s_lshr_b32 s%d, s%d, 3", sT0, sT1)
    a("s_add_u32 s%d, s%d, s%d", sHEAD, sHEAD, sT0)
    a("s_and_b32 s%d, s%d, 7", sQB, sT1)
    a("s_and_b32 s%d, s%d, 3", sWQ, sWAVE)
    a("s_lshr_b32 s%d, s%d, 2", sKH, sWAVE)
    a("s_mov_b32 s%d, 0x%08x", sTH, f32bits(THRESH))
    a("s_waitcnt lgkmcnt(0)")
    a("s_mul_i32 s%d, s%d, %d", sT0, sHEAD, 64 * 3072)
    a("s_add_u32 s%d, s%d, %d", sT0, sT0, WS_KV)
    a("s_add_u32 s%d, s4, s%d", SKV, sT0)
    a("s_addc_u32 s%d, s5, 0", SKV + 1)
    a("s_mov_b32 s%d, %d", SKV + 2, 64 * 3072)
    a("s_mov_b32 s%d, 0x00020000", SKV + 3)
    a("s_add_u32 s%d, s4, %d", SQ, WS_QB)
    a("s_addc_u32 s%d, s5, 0", SQ + 1)
    a("s_mov_b32 s%d, %d", SQ + 2, 2048 * 1280)
    a("s_mov_b32 s%d, 0x00020000", SQ + 3)
    a("s_add_u32 s%d, s4, %d", SO, WS_OB)
    a("s_addc_u32 s%d, s5, 0", SO + 1)
    a("s_mov_b32 s%d, %d", SO + 2, 2048 * 1280)
    a("s_mov_b32 s%d, 0x00020000", SO + 3)
    a("s_load_dwordx2 s[52:53], s[0:1], 16")
    a("s_load_dwordx2 s[56:57], s[0:1], 40")
    a("v_min_u32 v1, 24, v0")
    a("v_lshlrev_b32 v1, 7, v1")
    a("s_mov_b32 s54, %d", 640 * 1280)
    a("s_mov_b32 s55, 0x00020000")
    a("s_mov_b32 s58, %d", 640 * 1280)
    a("s_mov_b32 s59, 0x00020000")
    a("v_mov_b32 v195, v1")
    a("s_mul_i32 s51, s2, 3200")
    a("s_waitcnt lgkmcnt(0)")
    a("v_and_b32 v%d, 31, v0", vT0)
    a("v_lshrrev_b32 v%d, 5, v0", vT1)
    a("s_lshl_b32 s%d, s%d, 8", sT0, sQB)
    a("s_lshl_b32 s%d, s%d, 6", sT1, sWQ)
    a("s_add_u32 s%d, s%d, s%d", sT0, sT0, sT1)
    a("v_add_u32 v%d, s%d, v%d", vT2, sT0, vT0)
    a("s_mov_b32 s%d, 1280", sT1)
    a("s_mul_i32 s%d, s%d, 40", sT0, sHEAD)
    a("v_mov_b32 v14, s%d", sT0)
    a("v_mad_u32_u24 v%d, v%d, s%d, v14", vT2, vT2, sT1)
    a("v_lshl_add_u32 v14, v%d, 4, v%d", vT1, vT2)
    a("v_add_u32 v15, %d, v14", 32 * 1280)
    a("v_add_u32 v1, %d, v%d", 32 * 1280, vT2)
    for qt in range(2):
        a("buffer_load_dwordx2 %s, v%d, %s, 0 offen", vr(qf(qt, 0), 2), 14 + qt, sr(SQ, 4))
        a("buffer_load_dwordx2 %s, v%d, %s, 0 offen offset:8", vr(qf(qt, 0) + 2, 2), 14 + qt, sr(SQ, 4))
        a("buffer_load_dwordx2 %s, v%d, %s, 0 offen offset:32", vr(qf(qt, 1), 2), vT2 if qt == 0 else 1, sr(SQ, 4))
    a("s_mul_i32 s%d, s%d, 98304", sT0, sKH)
    a("s_mul_i32 s%d, s%d, 3072", sT1, sWQ)
    a("s_add_u32 s%d, s%d, s%d", sT0, sT0, sT1)
    a("v_lshlrev_b32 v%d, 4, v0", vDMA)
    a("v_add_u32 v%d, s%d, v%d", vDMA, sT0, vDMA)
    a("s_mul_i32 s%d, s%d, 12288", sDST, sKH)
    a("s_add_u32 s%d, s%d, s%d", sDST, sDST, sT1)
    sDST0 = 32
    a("s_mov_b32 s%d, s%d", sDST0, sDST)
    def dma(stage_lds_off_reg=None, imm_lds=None, soff_imm=None):
        pass
    SA = 36
    LREG = 3 * STG
    a("s_mov_b32 s%d, s4", SA)
    a("s_mov_b32 s%d, s5", SA + 1)
    a("s_mov_b32 s%d, %d", SA + 2, 2048 * 3840)
    a("s_mov_b32 s%d, 0x00020000", SA + 3)
    a("s_add_u32 s%d, s4, %d", SA + 4, WS_OA)
    a("s_addc_u32 s%d, s5, 0", SA + 5)
    a("s_mov_b32 s%d, %d", SA + 6, 2048 * 1280)
    a("s_mov_b32 s%d, 0x00020000", SA + 7)
    a("s_lshl_b32 s44, s2, 3")
    a("s_mul_i32 s%d, s%d, 12288", sT0, sKH)
    a("v_lshlrev_b32 v%d, 4, v0", vK1)
    a("v_add_u32 v%d, s%d, v%d", vK1, sT0, vK1)
    a("v_lshlrev_b32 v%d, 4, v%d", vK2, vT0)
    a("v_add_u32 v%d, s%d, v%d", vK2, sT0, vK2)
    a("v_add_u32 v%d, 1024, v%d", vK2, vK2)
    a("v_min_u32 v%d, 23, v%d", vV, vT0)
    a("v_lshlrev_b32 v%d, 4, v%d", vV, vV)
    a("v_mul_u32_u24 v14, 384, v%d", vT1)
    a("v_add_u32 v%d, v%d, v14", vV, vV)
    a("v_add_u32 v%d, s%d, v%d", vV, sT0, vV)
    a("v_add_u32 v%d, 1536, v%d", vV, vV)
    sMODE = 50
    a("s_mov_b32 s%d, 0", sMODE)
    a.label("%s_restart" % name)
    a("s_lshl_b32 s45, s%d, 1", sWAVE)
    for g in range(2):
        for j in range(3):
            a("s_add_u32 m0, s%d, %d", sDST0, g * STG + j * 1024)
            a("s_mov_b32 s%d, %d", sT0, g * 12288 + j * 1024)
            a("buffer_load_dwordx4 v%d, %s, s%d offen lds", vDMA, sr(SKV, 4), sT0)
    for r in range(32):
        a("v_mov_b32 v%d, 0", OO + r)
    a("s_waitcnt vmcnt(6)")
    a("v_cmp_gt_u32 vcc, 32, v0")
    a("s_nop 1")
    for qt in range(2):
        b = qf(qt, 1)
        a("v_cndmask_b32 v%d, 0, v%d, vcc", b, b)
        a("v_cndmask_b32 v%d, 0, v%d, vcc", b + 1, b + 1)
        a("v_mov_b32 v%d, 0", b + 2)
        a("v_mov_b32 v%d, 0", b + 3)
    a("s_waitcnt vmcnt(3)")
    a("s_barrier")
    a("ds_read_b128 %s, v%d", vr(KF, 4), vK1)
    a("ds_read_b128 %s, v%d", vr(KF + 4, 4), vK2)
    a("ds_read_b128 %s, v%d offset:3072", vr(KF + 8, 4), vK1)
    a("ds_read_b128 %s, v%d offset:3072", vr(KF + 12, 4), vK2)
    for r in range(8):
        a("v_mov_b32 v%d, 0", VF + 8 + r)
        a("v_mov_b32 v%d, 0", ss(1, 1) + r)
    a("s_waitcnt lgkmcnt(2)")
    for qt in range(2):
        d = vr(ss(qt, 0), 16)
        a("v_mfma_f32_32x32x16_bf16 %s, %s, %s, %s", d, vr(KF, 4), vr(qf(qt, 0), 4), vr(oo(qt), 16))
        a("v_mfma_f32_32x32x16_bf16 %s, %s, %s, %s", d, vr(KF + 4, 4), vr(qf(qt, 1), 4), d)
    a("s_nop 15")
    a("s_nop 15")
    def tilemax_ops(S, t):
        ops = ["v_max3_f32 v%d, v%d, v%d, v%d" % (t, S, S + 1, S + 2)]
        for i in range(3, 15, 2):
            ops.append("v_max3_f32 v%d, v%d, v%d, v%d" % (t, t, S + i, S + i + 1))
        ops.append("v_max_f32 v%d, v%d, v%d" % (t, t, S + 15))
        return ops
    for qt in range(2):
        S = ss(qt, 0)
        for o in tilemax_ops(S, vT0):
            a(o)
        a("v_mov_b32 v%d, v%d", vT1, vT0)
        a("s_nop 1")
        a("v_permlane32_swap_b32 v%d, v%d", vT0, vT1)
        a("v_max_f32 v%d, v%d, v%d", vT0, vT0, vT1)
        for i in range(16):
            a("v_sub_f32 v%d, v%d, v%d", S + i, S + i, vT0)
        for i in range(16):
            a("v_sub_f32 v%d, 0, v%d", nm(qt) + i, vT0)
    a("s_mov_b32 s%d, 0", sSTG)
    a("s_add_u32 s%d, s%d, %d", sDST, sDST0, 2 * STG)
    a("s_mov_b32 s%d, %d", sSOFF, 2 * 12288)
    a("s_mov_b32 s%d, 8", sCNT)
    a("v_mov_b32 v%d, v%d", cK1, vK1)
    a("v_mov_b32 v%d, v%d", cK2, vK2)
    a("v_mov_b32 v%d, v%d", cV, vV)
    a("v_add_u32 v%d, %d, v%d", nK1, STG, vK1)
    a("v_add_u32 v%d, %d, v%d", nK2, STG, vK2)
    rare = []
    def pv(qt, sbuf, vbuf, k):
        o = vr(oo(qt), 16)
        return "v_mfma_f32_32x32x16_bf16 %s, %s, %s, %s" % (o, vr(VF + 8 * vbuf + 4 * k, 4), vr(ss(qt, sbuf) + 4 * k, 4), o)
    def qk(qt, sbuf, kbuf, k):
        d = vr(ss(qt, sbuf), 16)
        c = vr(nm(qt), 16) if k == 0 else d
        return "v_mfma_f32_32x32x16_bf16 %s, %s, %s, %s" % (d, vr(KF + 8 * kbuf + 4 * k, 4), vr(qf(qt, k), 4), c)
    a("s_mov_b64 vcc, 0")
    instr_mark(a, 0)
    a0 = a
    def emit_loop(fast, sfx):
        def a(s, *args):
            if s is not None:
                a0(s, *args)
        a.label = a0.label
        a.comment = a0.comment
        a.label("%s_loop%s" % (name, sfx))
        for tt in range(4):
            cur = tt & 1
            nxt = cur ^ 1
            a.comment("---- tile %d" % tt)
            if tt == 2:
                a("s_waitcnt vmcnt(0)")
                a("s_barrier")
                for j in range(3):
                    a("s_add_u32 m0, s%d, %d", sDST, j * 1024)
                    a("s_add_u32 s%d, s%d, %d", sT0, sSOFF, j * 1024)
                    a("buffer_load_dwordx4 v%d, %s, s%d offen lds", vDMA, sr(SKV, 4), sT0)
                a("s_cmp_lg_u32 s%d, 3", sCNT)
                a("s_cbranch_scc1 %s_nowarm%s", name, sfx)
                a("s_cmp_lg_u32 s%d, 7", sWAVE)
                a("s_cbranch_scc1 %s_nowarm%s", name, sfx)
                a("buffer_load_dword v194, v195, s[52:55], s51 offen")
                a("buffer_load_dword v194, v195, s[56:59], s51 offen")
                a.label("%s_nowarm%s" % (name, sfx))
                a("s_cmp_lt_u32 s%d, 4", sCNT)
                a("s_cbranch_scc1 %s_nostage%s", name, sfx)
                for j in range(2):
                    a("s_add_u32 s46, s45, %d", j)
                    a("s_min_u32 s46, s46, 64")
                    a("s_lshl_b32 s46, s46, 10")
                    a("v_lshl_add_u32 v%d, v0, 4, s46", vT0)
                    a("s_mov_b32 s47, 52429")
                    a("v_lshrrev_b32 v%d, 9, v%d", vT1, vT0)
                    a("v_mul_u32_u24 v%d, s47, v%d", vT1, vT1)
                    a("v_lshrrev_b32 v%d, 18, v%d", vT1, vT1)
                    a("v_mul_u32_u24 v%d, 2560, v%d", vT2, vT1)
                    a("v_sub_u32 v%d, v%d, v%d", vT2, vT0, vT2)
                    a("v_add_u32 v%d, 1280, v%d", vT2, vT2)
                    a("v_add_u32 v%d, s44, v%d", vT1, vT1)
                    a("v_subrev_u32 v%d, 14, v%d", vT1, vT1)
                    a("v_max_i32 v%d, 0, v%d", vT1, vT1)
                    a("v_subrev_u32 v14, 56320, v%d", vT0)
                    a("v_lshrrev_b32 v15, 8, v14")
                    a("v_mul_u32_u24 v15, s47, v15")
                    a("v_lshrrev_b32 v15, 18, v15")
                    a("v_mul_u32_u24 v1, 1280, v15")
                    a("v_sub_u32 v14, v14, v1")
                    a("v_add_u32 v15, s44, v15")
                    a("s_mov_b32 s47, 56320")
                    a("v_cmp_le_u32 s[48:49], s47, v%d", vT0)
                    a("s_add_u32 m0, s46, %d", LREG)
                    a("s_nop 1")
                    a("v_cndmask_b32 v%d, v%d, v15, s[48:49]", vT1, vT1)
                    a("v_cndmask_b32 v%d, v%d, v14, s[48:49]", vT2, vT2)
                    a("s_mov_b32 s47, 3840")
                    a("v_mad_u32_u24 v%d, v%d, s47, v%d", vT0, vT1, vT2)
                    a("buffer_load_dwordx4 v%d, %s, 0 offen lds", vT0, sr(SA, 4))
                a("s_add_u32 s45, s45, 16")
                a.label("%s_nostage%s" % (name, sfx))
            for qt in range(2):
                S = ss(qt, cur)
                if qt == 0:
                    a("ds_read_b128 %s, v%d offset:%d", vr(VF + 8 * cur, 4), cV, tt * 3072)
                    a("ds_read_b128 %s, v%d offset:%d", vr(VF + 8 * cur + 4, 4), cV, tt * 3072 + 768)
                    m = [pv(1, nxt, nxt, 0), pv(1, nxt, nxt, 1), qk(0, nxt, nxt, 0), qk(0, nxt, nxt, 1)]
                else:
                    if tt < 2:
                        a("ds_read_b128 %s, v%d offset:%d", vr(KF + 8 * cur, 4), cK1, (tt + 2) * 3072)
                        a("ds_read_b128 %s, v%d offset:%d", vr(KF + 8 * cur + 4, 4), cK2, (tt + 2) * 3072)
                    else:
                        a("ds_read_b128 %s, v%d offset:%d", vr(KF + 8 * cur, 4), nK1, (tt - 2) * 3072)
                        a("ds_read_b128 %s, v%d offset:%d", vr(KF + 8 * cur + 4, 4), nK2, (tt - 2) * 3072)
                    m = [pv(0, cur, cur, 0), pv(0, cur, cur, 1), qk(1, nxt, nxt, 0), qk(1, nxt, nxt, 1)]
                if qt == 0:
                    mx = tilemax_ops(ss(1, cur), vMX + 1)
                    cmpop = "v_cmp_lt_f32 vcc, s%d, v%d" % (sTH, vMX + 1)
                else:
                    mx = tilemax_ops(ss(0, nxt), vMX + 0)
                    cmpop = "v_cmp_lt_f32 vcc, s%d, v%d" % (sTH, vMX + 0)
                lr = "%s_rare_%d_%d" % (name, tt, qt)
                lb = "%s_back_%d_%d" % (name, tt, qt)
                if fast:
                    mx = [None] * 8
                    cmpop = None
                else:
                    a("s_cbranch_vccnz %s", lr)
                    a.label(lb)
                    rare.append((lr, lb, qt, cur, nxt))
                e = lambda i: "v_exp_f32 v%d, v%d" % (S + i, S + i)
                cv = lambda k: "v_cvt_pk_bf16_f32 v%d, v%d, v%d" % (S + k, S + 2 * k, S + 2 * k + 1)
                a(e(0)); a(e(1))
                if qt == 1:
                    a("s_waitcnt lgkmcnt(2)")
                a(m[0])
                a(e(2)); a(mx[0]); a(e(3)); a(mx[1])
                a(e(4)); a(cv(0))
                a(m[1])
                a(e(5)); a(mx[2]); a(e(6)); a(cv(1)); a(e(7)); a(mx[3])
                if qt == 0:
                    a("s_waitcnt lgkmcnt(2)")
                a(m[2])
                a(e(8)); a(cv(2)); a(e(9)); a(mx[4]); a(e(10)); a(cv(3)); a(e(11)); a(mx[5])
                a(m[3])
                a(e(12)); a(cv(4)); a(e(13)); a(mx[6]); a(e(14)); a(cv(5)); a(e(15)); a(mx[7])
                a(cv(6)); a(cmpop); a(cv(7))
        a("s_add_u32 s%d, s%d, %d", sSTG, sSTG, STG)
        a("s_cmp_eq_u32 s%d, %d", sSTG, 3 * STG)
        a("s_cselect_b32 s%d, 0, s%d", sSTG, sSTG)
        a("s_add_u32 s%d, s%d, %d", sT0, sSTG, STG)
        a("s_cmp_eq_u32 s%d, %d", sT0, 3 * STG)
        a("s_cselect_b32 s%d, 0, s%d", sT0, sT0)
        a("s_add_u32 s%d, s%d, %d", sT1, sT0, STG)
        a("s_cmp_eq_u32 s%d, %d", sT1, 3 * STG)
        a("s_cselect_b32 s%d, 0, s%d", sT1, sT1)
        a("s_add_u32 s%d, s%d, s%d", sDST, sDST0, sT1)
        a("s_add_u32 s%d, s%d, 12288", sSOFF, sSOFF)
        a("v_add_u32 v%d, s%d, v%d", cK1, sSTG, vK1)
        a("v_add_u32 v%d, s%d, v%d", cK2, sSTG, vK2)
        a("v_add_u32 v%d, s%d, v%d", cV, sSTG, vV)
        a("v_add_u32 v%d, s%d, v%d", nK1, sT0, vK1)
        a("v_add_u32 v%d, s%d, v%d", nK2, sT0, vK2)
        a("s_sub_u32 s%d, s%d, 1", sCNT, sCNT)
        a("s_cmp_lg_u32 s%d, 0", sCNT)
        a("s_cbranch_scc1 %s_loop%s", name, sfx)

    a("s_cmp_lg_u32 s%d, 0", sMODE)
    a("s_cbranch_scc1 %s_safe", name)
    emit_loop(True, "f")
    a("s_branch %s_join", name)
    a.label("%s_safe" % name)
    emit_loop(False, "s")
    a.label("%s_join" % name)
    a(pv(1, 1, 1, 0))
    a(pv(1, 1, 1, 1))
    instr_mark(a, 1)
    a("s_waitcnt vmcnt(0) lgkmcnt(0)")
    a("s_nop 15")
    a("s_nop 15")
    FLAG = 3 * STG + 66560
    a("s_mov_b32 s46, 0x%08x", f32bits(2.0 ** 100))
    a("v_mov_b32 v%d, 0", vT0)
    for qt in range(2):
        for r in range(0, 8, 2):
            a("v_max3_f32 v%d, |v%d|, |v%d|, v%d", vT0, oo(qt) + r, oo(qt) + r + 1, vT0)
        a("v_cmp_nlt_f32 vcc, |v%d|, s46", oo(qt) + 8)
        a("s_mov_b64 s[%d:%d], vcc", 84 + 2 * qt, 85 + 2 * qt)
    a("v_cmp_nlt_f32 vcc, v%d, s46", vT0)
    a("v_cmp_u_f32 s[88:89], v%d, v%d", oo(0), oo(1))
    a("s_or_b64 vcc, vcc, s[84:85]")
    a("s_or_b64 vcc, vcc, s[86:87]")
    a("s_or_b64 vcc, vcc, s[88:89]")
    a("s_cselect_b32 s46, 1, 0")
    a("s_lshl_b32 s47, s%d, 2", sWAVE)
    a("s_add_u32 s47, s47, %d", FLAG)
    a("v_mov_b32 v%d, s47", vT1)
    a("v_mov_b32 v%d, s46", vT2)
    a("ds_write_b32 v%d, v%d", vT1, vT2)
    a("s_waitcnt lgkmcnt(0)")
    a("s_barrier")
    a("s_cmp_lg_u32 s%d, 0", sMODE)
    a("s_cbranch_scc1 %s_novote", name)
    a("v_and_b32 v%d, 7, v0", vT1)
    a("v_lshlrev_b32 v%d, 2, v%d", vT1, vT1)
    a("v_add_u32 v%d, %d, v%d", vT1, FLAG, vT1)
    a("ds_read_b32 v%d, v%d", vT2, vT1)
    a("s_waitcnt lgkmcnt(0)")
    a("v_cmp_ne_u32 vcc, 0, v%d", vT2)
    a("s_cbranch_vccz %s_novote", name)
    a("s_mov_b32 s%d, 1", sMODE)
    a("s_barrier")
    a("s_branch %s_restart", name)
    a.label("%s_novote" % name)
    a("s_mul_i32 s%d, s%d, %d", sT0, sWQ, 2 * 13 * 256)
    a("v_lshlrev_b32 v%d, 2, v0", vT2)
    a("v_add_u32 v%d, s%d, v%d", vT2, sT0, vT2)
    a("s_cmp_eq_u32 s%d, 0", sKH)
    a("s_cbranch_scc1 %s_comb0", name)
    for qt in range(2):
        for r in range(12):
            a("ds_write_b32 v%d, v%d offset:%d", vT2, oo(qt) + r, (qt * 13 + r) * 256)
        a("ds_write_b32 v%d, v%d offset:%d", vT2, nm(qt), (qt * 13 + 12) * 256)
    a("s_waitcnt lgkmcnt(0)")
    a("s_barrier")
    a("s_branch %s_local", name)
    a.label("%s_comb0" % name)
    a("s_barrier")
    X = SS
    for qt in range(2):
        for r in range(13):
            a("ds_read_b32 v%d, v%d offset:%d", X + qt * 16 + r, vT2, (qt * 13 + r) * 256)
    a("v_and_b32 v%d, 31, v0", vT0)
    a("v_lshrrev_b32 v%d, 5, v0", vT1)
    a("s_lshl_b32 s%d, s%d, 8", sT0, sQB)
    a("s_lshl_b32 s%d, s%d, 6", sT1, sWQ)
    a("s_add_u32 s%d, s%d, s%d", sT0, sT0, sT1)
    a("v_add_u32 v%d, s%d, v%d", vT0, sT0, vT0)
    a("s_mov_b32 s%d, 1280", sT1)
    a("s_mul_i32 s%d, s%d, 40", sT0, sHEAD)
    a("v_lshlrev_b32 v%d, 3, v%d", vT1, vT1)
    a("v_add_u32 v%d, s%d, v%d", vT1, sT0, vT1)
    a("v_mad_u32_u24 v14, v%d, s%d, v%d", vT0, sT1, vT1)
    a("v_add_u32 v15, %d, v14", 32 * 1280)
    a("s_waitcnt lgkmcnt(0)")
    for qt in range(2):
        x = X + qt * 16
        o = oo(qt)
        a("v_min_f32 v%d, v%d, v%d", vT0, nm(qt), x + 12)
        a("v_sub_f32 v%d, v%d, v%d", vT1, vT0, nm(qt))
        a("v_sub_f32 v%d, v%d, v%d", vT2, vT0, x + 12)
        a("v_exp_f32 v%d, v%d", vT1, vT1)
        a("v_exp_f32 v%d, v%d", vT2, vT2)
        a("s_nop 0")
        for r in range(12):
            a("v_mul_f32 v%d, v%d, v%d", o + r, o + r, vT1)
            a("v_fmac_f32 v%d, v%d, v%d", o + r, x + r, vT2)
        a("v_mov_b32 v%d, v%d", vT0, o + 8)
        a("v_mov_b32 v%d, v%d", vT1, o + 8)
        a("s_nop 1")
        a("v_permlane32_swap_b32 v%d, v%d", vT0, vT1)
        a("v_rcp_f32 v%d, v%d", vT1, vT1)
        a("s_nop 0")
        for r in range(12):
            a("v_mul_f32 v%d, v%d, v%d", o + r, o + r, vT1)
        for j in range(3):
            a("v_cvt_pk_bf16_f32 v%d, v%d, v%d", o + 4 * j, o + 4 * j, o + 4 * j + 1)
            a("v_cvt_pk_bf16_f32 v%d, v%d, v%d", o + 4 * j + 1, o + 4 * j + 2, o + 4 * j + 3)
        for j in range(2):
            a("buffer_store_dwordx2 %s, v%d, %s, 0 offen offset:%d", vr(o + 4 * j, 2), 14 + qt, sr(SO, 4), 16 * j)
    a("v_cmp_gt_u32 vcc, 32, v0")
    a("s_and_saveexec_b64 s[34:35], vcc")
    a("s_cbranch_execz %s_st_skip", name)
    for qt in range(2):
        a("buffer_store_dwordx2 %s, v%d, %s, 0 offen offset:%d", vr(oo(qt) + 8, 2), 14 + qt, sr(SO, 4), 32)
    a.label("%s_st_skip" % name)
    a("s_mov_b64 exec, s[34:35]")
    a("s_nop 1")
    a.label("%s_local" % name)
    LQ, LK, LV = 64, 70, 118
    LL, LO = 32, 48
    a("v_lshrrev_b32 v28, 1, v0")
    a("v_mul_u32_u24 v28, 40, v28")
    a("v_and_b32 v30, 1, v0")
    a("v_mad_u32_u24 v30, v30, 24, v28")
    sc = (20.0 ** -0.5) * math.log2(math.e)
    a("s_add_u32 s46, s44, s%d", sWAVE)
    a("s_mul_i32 s47, s%d, 1280", sWAVE)
    a("s_add_u32 s47, s47, %d", LREG + 56320)
    a("v_add_u32 v29, s47, v30")
    for i in range(3):
        a("ds_read_b64 %s, v29 offset:%d", vr(LQ + 2 * i, 2), 8 * i)
    a("s_mul_i32 s47, s%d, 2560", sWAVE)
    a("s_add_u32 s47, s47, %d", LREG)
    a("v_add_u32 v29, s47, v30")
    for w in range(8):
        for i in range(3):
            a("ds_read_b64 %s, v29 offset:%d", vr(LK + 6 * w + 2 * i, 2), (14 - 2 * w) * 2560 + 8 * i)
        if w % 4 == 3:
            a("s_waitcnt lgkmcnt(3)")
    for w in range(8):
        a("v_mov_b32 v%d, 0", LL + w)
    for d in range(12):
        a("v_mov_b32 v%d, 0", LO + d)
    a("v_and_b32 v60, 1, v0")
    a("v_cmp_eq_u32 vcc, 0, v60")
    a("s_waitcnt lgkmcnt(0)")
    a("v_cndmask_b32 v%d, 0, v%d, vcc", LQ + 4, LQ + 4)
    a("v_cndmask_b32 v%d, 0, v%d, vcc", LQ + 5, LQ + 5)
    for w in range(8):
        for i in range(3):
            a("ds_read_b64 %s, v29 offset:%d", vr(LV + 6 * w + 2 * i, 2), (14 - 2 * w) * 2560 + 1280 + 8 * i)
        if w % 4 == 3:
            a("s_waitcnt lgkmcnt(3)")
    for i in range(6):
        for w in range(8):
            a("v_dot2_f32_bf16 v%d, v%d, v%d, v%d", LL + w, LQ + i, LK + 6 * w + i, LL + w)
    a("s_nop 3")
    for w in range(8):
        a("v_add_f32_dpp v%d, v%d, v%d quad_perm:[1,0,3,2] row_mask:0xf bank_mask:0xf", 40 + w, LL + w, LL + w)
    a("s_mov_b32 s47, 0x%08x", f32bits(sc))
    a("v_mov_b32 v29, 0x%08x", f32bits(-1e30))
    for w in range(8):
        a("v_mul_f32 v%d, s47, v%d", LL + w, 40 + w)
    for w in range(1, 8):
        a("s_cmp_ge_u32 s46, %d", 2 * w)
        a("s_cbranch_scc1 %s_lv_%d", name, w)
        a("v_mov_b32 v%d, v29", LL + w)
        a.label("%s_lv_%d" % (name, w))
    a("v_max3_f32 v60, v%d, v%d, v%d", LL, LL + 1, LL + 2)
    a("v_max3_f32 v60, v60, v%d, v%d", LL + 3, LL + 4)
    a("v_max3_f32 v60, v60, v%d, v%d", LL + 5, LL + 6)
    a("v_max_f32 v60, v60, v%d", LL + 7)
    for w in range(8):
        a("v_sub_f32 v%d, v%d, v60", LL + w, LL + w)
    for w in range(8):
        a("v_exp_f32 v%d, v%d", LL + w, LL + w)
    a("s_nop 0")
    a("v_add_f32 v61, v%d, v%d", LL, LL + 1)
    for w in range(2, 8):
        a("v_add_f32 v61, v61, v%d", LL + w)
    a("v_rcp_f32 v61, v61")
    a("s_nop 0")
    for w in range(8):
        a("v_mul_f32 v%d, v%d, v61", LL + w, LL + w)
    a("s_waitcnt lgkmcnt(0)")
    for w in range(8):
        for i in range(6):
            src = LV + 6 * w + i
            a("v_lshlrev_b32 v62, 16, v%d", src)
            a("v_and_b32 v63, 0xffff0000, v%d", src)
            a("v_fmac_f32 v%d, v%d, v62", LO + 2 * i, LL + w)
            a("v_fmac_f32 v%d, v%d, v63", LO + 2 * i + 1, LL + w)
    for i in range(6):
        a("v_cvt_pk_bf16_f32 v%d, v%d, v%d", 40 + i, LO + 2 * i, LO + 2 * i + 1)
    a("s_mul_i32 s47, s46, 1280")
    a("buffer_store_dwordx4 v[40:43], v30, %s, s47 offen", sr(SA + 4, 4))
    a("s_and_b64 exec, exec, vcc")
    a("buffer_store_dwordx2 v[44:45], v30, %s, s47 offen offset:16", sr(SA + 4, 4))
    a.label("%s_done" % name)
    instr_end(a, 5)
    a.label("%s_done2" % name)
    a("s_endpgm")
    for (lr, lb, qt, cur, nxt) in rare:
        a.label(lr)
        a("s_nop 15")
        a("s_nop 7")
        a("v_mov_b32 v%d, v%d", vT0, vMX + qt)
        a("v_mov_b32 v%d, v%d", vT1, vMX + qt)
        a("s_nop 1")
        a("v_permlane32_swap_b32 v%d, v%d", vT0, vT1)
        a("v_max3_f32 v%d, v%d, v%d, 0", vT0, vT0, vT1)
        a("v_exp_f32 v%d, -v%d", vT1, vT0)
        for i in range(16):
            a("v_sub_f32 v%d, v%d, v%d", ss(qt, cur) + i, ss(qt, cur) + i, vT0)
        for i in range(16):
            a("v_sub_f32 v%d, v%d, v%d", nm(qt) + i, nm(qt) + i, vT0)
        for i in range(16):
            a("v_mul_f32 v%d, v%d, v%d", oo(qt) + i, oo(qt) + i, vT1)
        a("s_nop 1")
        a("s_branch %s", lb)
    return name, VEND, 3 * STG + 66560 + 64, 512
```

```python
from common import *

class GemmCfg:
    def __init__(self, TM, WM, WN, ldw):
        self.TM, self.WM, self.WN, self.ldw = TM, WM, WN, ldw
        self.NW = WM * WN
        self.MT = TM // WM // 32
        self.NT = 128 // WN // 32
        self.NA = TM // 8 // self.NW
        self.NB = 16 // self.NW
        self.ABYTES = TM * 128
        self.STAGE = self.ABYTES + 64 * 256
        self.NST = 3
        self.KSTEPS = 10
        self.vDA = 8
        self.vDB = self.vDA + self.NA
        self.vRA = self.vDB + self.NB
        self.vRB = self.vRA + 12
        f = self.vRB + 3 * self.NT
        f = (f + 3) // 4 * 4
        self.vFA = f
        self.vFB = self.vFA + 2 * self.MT * 4
        self.vACC = self.vFB + 2 * self.NT * 4
        self.vEND = self.vACC + self.MT * self.NT * 16
    def acc(self, mt, nt):
        return self.vACC + (mt * self.NT + nt) * 16
    def fa(self, buf, mt):
        return self.vFA + (buf * self.MT + mt) * 4
    def fb(self, buf, nt):
        return self.vFB + (buf * self.NT + nt) * 4

S_SRDA = 12
S_SRDW = 16
S_SRDO = 20
S_WAVE = 24
S_MT = 25
S_NT = 26
S_BR = 27
S_LA = 28
S_LB = 29
S_SOFF = 30
S_T0 = 31
S_T1 = 32
S_T2 = 33
S_WMROW = 34
S_WNCOL = 35
S_KK = 42

def gemm_setup_lane_regs(a, c):
    a.comment("wave id, lane id")
    a("v_lshrrev_b32 v1, 6, v0")
    a("v_and_b32 v2, 63, v0")
    a("s_nop 0")
    a("v_readfirstlane_b32 s%d, v1", S_WAVE)
    a("s_nop 3")
    a("s_and_b32 s%d, s%d, %d", S_T0, S_WAVE, c.WM - 1)
    a("s_mul_i32 s%d, s%d, %d", S_WMROW, S_T0, c.MT * 32)
    a("s_lshr_b32 s%d, s%d, %d", S_T0, S_WAVE, {1: 0, 2: 1, 4: 2}[c.WM])
    a("s_mul_i32 s%d, s%d, %d", S_WNCOL, S_T0, c.NT * 32)
    a("s_mul_i32 s%d, s%d, %d", S_LA, S_WAVE, c.NA * 1024)
    a("s_mul_i32 s%d, s%d, %d", S_LB, S_WAVE, c.NB * 1024)
    a("s_add_u32 s%d, s%d, %d", S_LB, S_LB, c.ABYTES)
    a("v_lshrrev_b32 v3, 3, v2")
    a("s_mul_i32 s%d, s%d, %d", S_T0, S_WAVE, c.NA * 8)
    a("v_add_u32 v3, s%d, v3", S_T0)
    a("v_and_b32 v4, 7, v2")
    a("s_mov_b32 s%d, 1280", S_T1)
    for j in range(c.NA):
        a("v_add_u32 v5, %d, v3", 8 * j)
        a("v_bfe_u32 v6, v5, 1, 3")
        a("v_xor_b32 v6, v6, v4")
        a("v_lshlrev_b32 v6, 4, v6")
        a("v_mad_u32_u24 v%d, v5, s%d, v6", c.vDA + j, S_T1)
    a("v_lshrrev_b32 v3, 4, v2")
    a("v_lshlrev_b32 v4, 2, v3")
    a("v_and_b32 v5, 15, v2")
    a("v_xor_b32 v4, v4, v5")
    a("v_lshlrev_b32 v4, 4, v4")
    a("s_mul_i32 s%d, s%d, %d", S_T0, S_WAVE, c.NB * 4)
    a("v_add_u32 v3, s%d, v3", S_T0)
    a("s_mov_b32 s%d, %d", S_T1, c.ldw)
    for j in range(c.NB):
        a("v_add_u32 v5, %d, v3", 4 * j)
        a("v_mad_u32_u24 v%d, v5, s%d, v4", c.vDB + j, S_T1)
    a("v_and_b32 v3, 31, v2")
    a("v_add_u32 v3, s%d, v3", S_WMROW)
    a("v_lshrrev_b32 v4, 5, v2")
    a("v_bfe_u32 v5, v3, 1, 3")
    a("v_lshlrev_b32 v3, 7, v3")
    for ks in range(4):
        a("v_add_u32 v6, %d, v4", 2 * ks)
        a("v_xor_b32 v6, v6, v5")
        a("v_lshl_add_u32 v%d, v6, 4, v3", c.vRA + ks)
        for st in (1, 2):
            a("v_add_u32 v%d, %d, v%d", c.vRA + 4 * st + ks, st * c.STAGE, c.vRA + ks)
    a("v_bfe_u32 v3, v2, 2, 2")
    a("v_and_b32 v4, 3, v2")
    a("v_bfe_u32 v5, v2, 4, 1")
    a("v_lshrrev_b32 v6, 5, v2")
    a("v_lshl_add_u32 v6, v6, 3, v3")
    a("v_lshlrev_b32 v6, 8, v6")
    a("v_and_b32 v7, 1, v4")
    a("v_lshl_add_u32 v6, v7, 3, v6")
    a("v_add_u32 v6, %d, v6", c.ABYTES)
    a("v_lshrrev_b32 v4, 1, v4")
    a("v_lshl_add_u32 v4, v5, 1, v4")
    a("s_lshr_b32 s%d, s%d, 3", S_T0, S_WNCOL)
    a("v_add_u32 v4, s%d, v4", S_T0)
    a("v_lshlrev_b32 v3, 2, v3")
    for nt in range(c.NT):
        a("v_add_u32 v5, %d, v4", 4 * nt)
        a("v_xor_b32 v5, v5, v3")
        a("v_lshl_add_u32 v%d, v5, 4, v6", c.vRB + nt)
        for st in (1, 2):
            a("v_add_u32 v%d, %d, v%d", c.vRB + c.NT * st + nt, st * c.STAGE, c.vRB + nt)

import os
EXP = os.environ.get("EXP", "")
MARKSTEP = int(os.environ.get("MARKSTEP", "0"))
def gemm_issue_dma(a, c, kstep):
    st = kstep % c.NST
    if "nodma" in EXP and kstep > 2:
        return
    a("s_lshl_b32 s%d, s%d, 7", S_SOFF, S_KK)
    for j in range(c.NA):
        a("s_add_u32 m0, s%d, %d", S_LA, st * c.STAGE + j * 1024)
        a("s_nop 0")
        a("buffer_load_dwordx4 v%d, %s, s%d offen lds", c.vDA + j, sr(S_SRDA, 4), S_SOFF)
    a("s_mul_i32 s%d, s%d, %d", S_SOFF, S_KK, 64 * c.ldw)
    for j in range(c.NB):
        a("s_add_u32 m0, s%d, %d", S_LB, st * c.STAGE + j * 1024)
        a("s_nop 0")
        a("buffer_load_dwordx4 v%d, %s, s%d offen lds", c.vDB + j, sr(S_SRDW, 4), S_SOFF)
    a("s_add_u32 s%d, s%d, 1", S_KK, S_KK)
    a("s_cmp_eq_u32 s%d, 10", S_KK)
    a("s_cselect_b32 s%d, 0, s%d", S_KK, S_KK)

def gemm_frag_reads(a, c, st, ks, buf):
    for mt in range(c.MT):
        a("ds_read_b128 %s, v%d offset:%d", vr(c.fa(buf, mt), 4), c.vRA + 4 * st + ks, mt * 4096)
    for nt in range(c.NT):
        for j in range(2):
            a("ds_read_b64_tr_b16 %s, v%d offset:%d", vr(c.fb(buf, nt) + 2 * j, 2), c.vRB + c.NT * st + nt, (16 * ks + 4 * j) * 256)

def gemm_mainloop(a, c, orient, touch=None):
    nread = c.MT + 2 * c.NT
    ndma = c.NA + c.NB
    for r in range(c.MT * c.NT * 16):
        a("v_mov_b32 v%d, 0", c.vACC + r)
    gemm_issue_dma(a, c, 0)
    gemm_issue_dma(a, c, 1)
    ntouch = 0
    if touch is not None and "touch" in EXP:
        ntouch = touch(a)
    for i in range(c.KSTEPS):
        st = i % c.NST
        a.comment("---- k-step %d" % i)
        a("s_waitcnt vmcnt(%d)", (ndma + (ntouch if i < 2 else 0)) if i + 1 < c.KSTEPS else 0)
        a("s_barrier")
        if i == MARKSTEP:
            instr_mark(a, 0)
        gemm_frag_reads(a, c, st, 0, 0)
        if i + 2 < c.KSTEPS:
            gemm_issue_dma(a, c, i + 2)
        for ks in range(4):
            buf = ks & 1
            if ks < 3:
                gemm_frag_reads(a, c, st, ks + 1, buf ^ 1)
                a("s_waitcnt lgkmcnt(%d)", nread)
            else:
                a("s_waitcnt lgkmcnt(0)")
            for mt in range(c.MT):
                for nt in range(c.NT):
                    x = vr(c.fa(buf, mt), 4)
                    w = vr(c.fb(buf, nt), 4)
                    d = vr(c.acc(mt, nt), 16)
                    if "nomfma" in EXP:
                        continue
                    if orient == 'NT':
                        a("v_mfma_f32_32x32x16_bf16 %s, %s, %s, %s", d, w, x, d)
                    else:
                        a("v_mfma_f32_32x32x16_bf16 %s, %s, %s, %s", d, x, w, d)
    a("s_nop 15")
    a("s_nop 15")
    instr_mark(a, 1)

def div20(a, vq, vrem, vn, stmp):
    a("v_mul_u32_u24 v%d, s%d, v%d", vq, stmp, vn)
    a("v_lshrrev_b32 v%d, 16, v%d", vq, vq)
    a("v_mul_u32_u24 v%d, 20, v%d", vrem, vq)
    a("v_sub_u32 v%d, v%d, v%d", vrem, vn, vrem)

def gen_qkv(a):
    c = GemmCfg(256, 4, 2, 3840)
    name = "qkv_kernel"
    kernel_header(a, name)
    a("s_cmp_ge_u32 s2, 256")
    a("s_cbranch_scc1 %s_done2", name)
    a("s_and_b32 s%d, s2, 7", S_T0)
    a("s_lshr_b32 s%d, s2, 3", S_T1)
    a("s_and_b32 s%d, s%d, 1", S_BR, S_T0)
    a("s_bfe_u32 s%d, s%d, 0x10001", S_MT, S_T0)
    a("s_lshl_b32 s%d, s%d, 2", S_MT, S_MT)
    a("s_and_b32 s%d, s%d, 3", S_T2, S_T1)
    a("s_add_u32 s%d, s%d, s%d", S_MT, S_MT, S_T2)
    a("s_lshr_b32 s%d, s%d, 2", S_NT, S_T0)
    a("s_lshl_b32 s%d, s%d, 3", S_NT, S_NT)
    a("s_lshr_b32 s%d, s%d, 2", S_T2, S_T1)
    a("s_add_u32 s%d, s%d, s%d", S_NT, S_NT, S_T2)
    a("s_cmp_ge_u32 s%d, 15", S_NT)
    a("s_cbranch_scc1 %s_done2", name)
    a("s_mul_i32 s%d, s%d, 3", S_KK, S_T1)
    a("s_mul_i32 s%d, s%d, 6554", S_T2, S_KK)
    a("s_lshr_b32 s%d, s%d, 16", S_T2, S_T2)
    a("s_mul_i32 s%d, s%d, 10", S_T2, S_T2)
    a("s_sub_u32 s%d, s%d, s%d", S_KK, S_KK, S_T2)
    a("s_mov_b32 s%d, 0", S_KK)
    instr_begin(a)
    a("s_load_dwordx4 s[4:7], s[0:1], 0")
    a("s_load_dwordx4 s[8:11], s[0:1], 24")
    a("s_load_dwordx2 s[36:37], s[0:1], 64")
    a("s_waitcnt lgkmcnt(0)")
    a("s_cmp_eq_u32 s%d, 0", S_BR)
    a("s_cselect_b64 s[4:5], s[4:5], s[8:9]")
    a("s_cselect_b64 s[6:7], s[6:7], s[10:11]")
    a("s_mul_i32 s%d, s%d, %d", S_T0, S_MT, 256 * 1280)
    a("s_add_u32 s%d, s4, s%d", S_SRDA, S_T0)
    a("s_addc_u32 s%d, s5, 0", S_SRDA + 1)
    a("s_mov_b32 s%d, %d", S_SRDA + 2, 256 * 1280)
    a("s_mov_b32 s%d, 0x00020000", S_SRDA + 3)
    a("s_lshl_b32 s%d, s%d, 8", S_T0, S_NT)
    a("s_add_u32 s%d, s6, s%d", S_SRDW, S_T0)
    a("s_addc_u32 s%d, s7, 0", S_SRDW + 1)
    a("s_sub_u32 s%d, %d, s%d", S_SRDW + 2, 640 * 3840, S_T0)
    a("s_mov_b32 s%d, 0x00020000", S_SRDW + 3)
    a("s_mov_b32 s%d, s36", S_SRDO)
    a("s_mov_b32 s%d, s37", S_SRDO + 1)
    a("s_mov_b32 s%d, %d", S_SRDO + 2, 32 << 20)
    a("s_mov_b32 s%d, 0x00020000", S_SRDO + 3)
    gemm_setup_lane_regs(a, c)
    a("s_cmp_eq_u32 s%d, 1", S_BR)
    a("s_cselect_b32 s%d, s%d, 0", S_T0, S_NT)
    a("s_cmp_ge_u32 s%d, 10", S_T0)
    a("s_cbranch_scc1 %s_vtile", name)
    def touch(a):
        a.comment("cache warm-up: touch one dword per 128-B line of later k-slices (shared out over the workgroups)")
        a("v_and_b32 v2, 63, v0")
        a("s_and_b32 s%d, s%d, 3", S_T0, S_MT)
        a("s_lshl_b32 s%d, s%d, 8", S_T0, S_T0)
        a("s_lshl_b32 s%d, s%d, 5", S_T1, S_WAVE)
        a("s_add_u32 s%d, s%d, s%d", S_T0, S_T0, S_T1)
        a("v_and_b32 v3, 31, v2")
        a("v_add_u32 v3, s%d, v3", S_T0)
        a("v_lshrrev_b32 v4, 1, v3")
        a("v_add_u32 v4, 128, v4")
        a("v_and_b32 v3, 1, v3")
        a("v_lshlrev_b32 v3, 7, v3")
        a("s_mov_b32 s%d, 3840", S_T1)
        a("v_mad_u32_u24 v3, v4, s%d, v3", S_T1)
        a("buffer_load_dword v1, v3, %s, 0 offen", sr(S_SRDW, 4))
        a("s_and_b32 s%d, s%d, 7", S_T0, S_NT)
        a("s_lshl_b32 s%d, s%d, 5", S_T0, S_T0)
        a("s_lshl_b32 s%d, s%d, 2", S_T1, S_WAVE)
        a("s_add_u32 s%d, s%d, s%d", S_T0, S_T0, S_T1)
        a("v_lshrrev_b32 v4, 4, v2")
        a("v_add_u32 v4, s%d, v4", S_T0)
        a("v_and_b32 v3, 7, v2")
        a("v_lshlrev_b32 v3, 7, v3")
        a("v_add_u32 v3, 256, v3")
        a("s_mov_b32 s%d, 1280", S_T1)
        a("v_mad_u32_u24 v3, v4, s%d, v3", S_T1)
        a("buffer_load_dword v1, v3, %s, 0 offen", sr(S_SRDA, 4))
        return 2
    gemm_mainloop(a, c, 'NT', touch)
    a("v_and_b32 v2, 63, v0")
    a("v_and_b32 v3, 31, v2")
    a("v_lshrrev_b32 v4, 5, v2")
    a("v_lshlrev_b32 v4, 2, v4")
    a("s_lshl_b32 s%d, s%d, 7", S_T0, S_NT)
    a("s_add_u32 s%d, s%d, s%d", S_T0, S_T0, S_WNCOL)
    a("v_add_u32 v4, s%d, v4", S_T0)
    a("s_lshl_b32 s%d, s%d, 8", S_T1, S_MT)
    a("s_add_u32 s%d, s%d, s%d", S_T1, S_T1, S_WMROW)
    a("v_add_u32 v5, s%d, v3", S_T1)
    a("s_mov_b32 s%d, 3277", S_T2)
    a("s_cmp_eq_u32 s%d, 1", S_BR)
    a("s_cselect_b32 s38, s%d, 0", S_NT)
    a("s_cmp_ge_u32 s38, 5")
    a("s_cbranch_scc1 %s_epiK", name)
    import struct, math
    sc = (20.0 ** -0.5) * math.log2(math.e)
    SC = struct.unpack('<I', struct.pack('<f', sc))[0]
    a("s_cmp_eq_u32 s%d, 1", S_BR)
    a("s_cselect_b32 s38, 0x%08x, 1.0", SC)
    a("s_mov_b32 s39, 3840")
    a("s_cselect_b32 s39, 1280, s39")
    a("s_mov_b32 s40, %d", WS_QA)
    a("s_cselect_b32 s40, %d, s40", WS_QB)
    a("s_barrier")
    CST = 272
    a("v_add_u32 v6, s%d, v3", S_WMROW)
    a("v_mul_u32_u24 v6, %d, v6", CST)
    a("v_lshrrev_b32 v7, 5, v2")
    a("v_lshlrev_b32 v7, 3, v7")
    a("s_lshl_b32 s41, s%d, 1", S_WNCOL)
    a("v_add3_u32 v6, v6, v7, s41")
    for mt in range(c.MT):
        for nt in range(c.NT):
            for j in range(4):
                r = c.acc(mt, nt) + 4 * j
                for q in range(4):
                    a("v_mul_f32 v%d, s38, v%d", r + q, r + q)
                a("v_cvt_pk_bf16_f32 v%d, v%d, v%d", r, r, r + 1)
                a("v_cvt_pk_bf16_f32 v%d, v%d, v%d", r + 1, r + 2, r + 3)
                a("ds_write_b64 v6, %s offset:%d", vr(r, 2), mt * 32 * CST + (nt * 32 + 8 * j) * 2)
    a("s_waitcnt lgkmcnt(0)")
    a("s_barrier")
    a("v_lshrrev_b32 v6, 4, v2")
    a("s_lshl_b32 s41, s%d, 5", S_WAVE)
    a("v_add_u32 v6, s41, v6")
    a("v_and_b32 v7, 15, v2")
    a("v_lshlrev_b32 v7, 4, v7")
    a("v_mul_u32_u24 v8, %d, v6", CST)
    a("v_add_u32 v8, v8, v7")
    a("s_lshl_b32 s41, s%d, 8", S_MT)
    a("v_add_u32 v6, s41, v6")
    a("v_mul_lo_u32 v6, v6, s39")
    a("s_lshl_b32 s41, s%d, 8", S_NT)
    a("s_add_u32 s41, s41, s40")
    a("v_add3_u32 v6, v6, v7, s41")
    a("s_lshl_b32 s41, s39, 2")
    D0 = c.vACC
    for it in range(8):
        a("ds_read_b128 %s, v8 offset:%d", vr(D0 + 4 * it, 4), it * 4 * CST)
    for it in range(8):
        a("s_waitcnt lgkmcnt(%d)", 7 - it)
        a("buffer_store_dwordx4 %s, v6, %s, 0 offen", vr(D0 + 4 * it, 4), sr(S_SRDO, 4))
        if it < 7:
            a("v_add_u32 v6, s41, v6")
    a("s_branch %s_done", name)
    a.label("%s_epiK" % name)
    a("v_subrev_u32 v4, 640, v4")
    a("s_lshr_b32 s%d, s%d, 5", S_T1, S_T1)
    a("s_mul_i32 s%d, s%d, 3072", S_T1, S_T1)
    a("s_add_u32 s%d, s%d, %d", S_T1, S_T1, WS_KV)
    a("v_lshlrev_b32 v5, 4, v3")
    a("v_add_u32 v5, s%d, v5", S_T1)
    a("s_mov_b32 s%d, %d", S_T0, 64 * 3072)
    a("v_mov_b32 v%d, 0" % (c.vFA)); a("v_mov_b32 v%d, 0" % (c.vFA + 1))
    for nt in range(c.NT):
        for j in range(4):
            a("v_add_u32 v1, %d, v4", nt * 32 + 8 * j)
            div20(a, 6, 7, 1, S_T2)
            a("v_mul_u32_u24 v6, s%d, v6", S_T0)
            a("v_lshrrev_b32 v1, 3, v7")
            a("v_lshl_add_u32 v6, v1, 9, v6")
            a("v_and_b32 v1, 7, v7")
            a("v_lshl_add_u32 v6, v1, 1, v6")
            a("v_add_u32 v6, v6, v5")
            a("v_cmp_eq_u32 vcc, 16, v7")
            for mt in range(c.MT):
                r = c.acc(mt, nt) + 4 * j
                a("v_cvt_pk_bf16_f32 v%d, v%d, v%d", r, r, r + 1)
                a("v_cvt_pk_bf16_f32 v%d, v%d, v%d", r + 1, r + 2, r + 3)
                a("buffer_store_dwordx2 %s, v6, %s, 0 offen offset:%d", vr(r, 2), sr(S_SRDO, 4), mt * 3072)
            a("s_and_saveexec_b64 s[38:39], vcc")
            a("s_cbranch_execz %s_kz_%d_%d", name, nt, j)
            for mt in range(c.MT):
                a("buffer_store_dwordx2 %s, v6, %s, 0 offen offset:%d", vr(c.vFA, 2), sr(S_SRDO, 4), mt * 3072 + 8)
            a.label("%s_kz_%d_%d" % (name, nt, j))
            a("s_mov_b64 exec, s[38:39]")
    a("s_branch %s_done", name)
    a.label("%s_vtile" % name)
    gemm_mainloop(a, c, 'TN', touch)
    a("v_and_b32 v2, 63, v0")
    a("v_and_b32 v3, 31, v2")
    a("v_lshrrev_b32 v4, 5, v2")
    a("s_lshl_b32 s%d, s%d, 7", S_T0, S_NT)
    a("s_add_u32 s%d, s%d, s%d", S_T0, S_T0, S_WNCOL)
    a("s_sub_u32 s%d, s%d, 1280", S_T0, S_T0)
    a("v_add_u32 v3, s%d, v3", S_T0)
    a("s_lshl_b32 s%d, s%d, 8", S_T1, S_MT)
    a("s_add_u32 s%d, s%d, s%d", S_T1, S_T1, S_WMROW)
    a("s_lshr_b32 s%d, s%d, 5", S_T1, S_T1)
    a("s_mul_i32 s%d, s%d, 3072", S_T1, S_T1)
    a("s_add_u32 s%d, s%d, %d", S_T1, S_T1, WS_KV + 1536)
    a("v_mul_u32_u24 v5, 384, v4")
    a("v_add_u32 v5, s%d, v5", S_T1)
    a("s_mov_b32 s%d, 3277", S_T2)
    a("s_mov_b32 s%d, %d", S_T0, 64 * 3072)
    for t in range(4):
        a("v_mov_b32 v%d, 0x3f803f80", c.vFA + t)
    for nt in range(c.NT):
        a("v_add_u32 v1, %d, v3", nt * 32)
        div20(a, 6, 7, 1, S_T2)
        a("v_mul_u32_u24 v6, s%d, v6", S_T0)
        a("v_lshl_add_u32 v6, v7, 4, v6")
        a("v_add_u32 v6, v6, v5")
        a("v_cmp_eq_u32 vcc, 19, v7")
        for mt in range(c.MT):
            r = c.acc(mt, nt)
            for k in range(8):
                a("v_cvt_pk_bf16_f32 v%d, v%d, v%d", r + k, r + 2 * k, r + 2 * k + 1)
            for step in range(2):
                a("buffer_store_dwordx4 %s, v6, %s, 0 offen offset:%d", vr(r + 4 * step, 4), sr(S_SRDO, 4), mt * 3072 + step * 768)
        a("s_and_saveexec_b64 s[38:39], vcc")
        a("s_cbranch_execz %s_vo_%d", name, nt)
        for mt in range(c.MT):
            for step in range(2):
                a("buffer_store_dwordx4 %s, v6, %s, 0 offen offset:%d", vr(c.vFA, 4), sr(S_SRDO, 4), mt * 3072 + step * 768 + 16)
        a.label("%s_vo_%d" % (name, nt))
        a("s_mov_b64 exec, s[38:39]")
    a.label("%s_done" % name)
    instr_end(a, 5)
    a.label("%s_done2" % name)
    a("s_endpgm")
    return name, c.vEND, c.STAGE * c.NST, 512

def gen_oproj(a):
    c = GemmCfg(64, 2, 2, 1280)
    name = "oproj_kernel"
    kernel_header(a, name)
    a("s_cmp_ge_u32 s2, 320")
    a("s_cbranch_scc1 %s_done2", name)
    instr_begin(a)
    a("s_load_dwordx2 s[4:5], s[0:1], 16")
    a("s_load_dwordx2 s[6:7], s[0:1], 40")
    a("s_load_dwordx2 s[8:9], s[0:1], 48")
    a("s_load_dwordx2 s[36:37], s[0:1], 64")
    a("s_and_b32 s%d, s2, 7", S_T0)
    a("s_lshr_b32 s%d, s2, 3", S_T1)
    a("s_and_b32 s%d, s%d, 1", S_BR, S_T0)
    a("s_lshr_b32 s%d, s%d, 1", S_MT, S_T0)
    a("s_lshl_b32 s%d, s%d, 3", S_MT, S_MT)
    a("s_mul_i32 s%d, s%d, 52429", S_T2, S_T1)
    a("s_lshr_b32 s%d, s%d, 18", S_T2, S_T2)
    a("s_add_u32 s%d, s%d, s%d", S_MT, S_MT, S_T2)
    a("s_mul_i32 s%d, s%d, 5", S_T2, S_T2)
    a("s_sub_u32 s%d, s%d, s%d", S_NT, S_T1, S_T2)
    a("s_waitcnt lgkmcnt(0)")
    a("s_cmp_eq_u32 s%d, 0", S_BR)
    a("s_cselect_b64 s[6:7], s[4:5], s[6:7]")
    a("s_mov_b32 s%d, %d", S_T1, WS_OB)
    a("s_cselect_b32 s%d, %d, s%d", S_T1, WS_OA, S_T1)
    a("s_mul_i32 s%d, s%d, %d", S_T0, S_MT, 64 * 1280)
    a("s_add_u32 s%d, s%d, s%d", S_T0, S_T0, S_T1)
    a("s_add_u32 s%d, s36, s%d", S_SRDA, S_T0)
    a("s_addc_u32 s%d, s37, 0", S_SRDA + 1)
    a("s_mov_b32 s%d, %d", S_SRDA + 2, 64 * 1280)
    a("s_mov_b32 s%d, 0x00020000", S_SRDA + 3)
    a("s_lshl_b32 s%d, s%d, 8", S_T0, S_NT)
    a("s_add_u32 s%d, s6, s%d", S_SRDW, S_T0)
    a("s_addc_u32 s%d, s7, 0", S_SRDW + 1)
    a("s_sub_u32 s%d, %d, s%d", S_SRDW + 2, 640 * 1280, S_T0)
    a("s_mov_b32 s%d, 0x00020000", S_SRDW + 3)
    a("s_mov_b32 s%d, s8", S_SRDO)
    a("s_mov_b32 s%d, s9", S_SRDO + 1)
    a("s_mov_b32 s%d, %d", S_SRDO + 2, 2048 * 2560)
    a("s_mov_b32 s%d, 0x00020000", S_SRDO + 3)
    gemm_setup_lane_regs(a, c)
    gemm_mainloop(a, c, 'NT')
    a("v_and_b32 v2, 63, v0")
    a("v_and_b32 v3, 31, v2")
    a("v_lshrrev_b32 v4, 5, v2")
    a("v_lshlrev_b32 v4, 2, v4")
    a("s_lshl_b32 s%d, s%d, 7", S_T0, S_NT)
    a("s_add_u32 s%d, s%d, s%d", S_T0, S_T0, S_WNCOL)
    a("s_mul_i32 s%d, s%d, 640", S_T2, S_BR)
    a("s_add_u32 s%d, s%d, s%d", S_T0, S_T0, S_T2)
    a("v_add_u32 v4, s%d, v4", S_T0)
    a("s_lshl_b32 s%d, s%d, 6", S_T1, S_MT)
    a("s_add_u32 s%d, s%d, s%d", S_T1, S_T1, S_WMROW)
    a("v_add_u32 v5, s%d, v3", S_T1)
    a("s_mov_b32 s%d, 2560", S_T2)
    a("v_mul_u32_u24 v6, s%d, v5", S_T2)
    a("v_lshl_add_u32 v6, v4, 1, v6")
    for nt in range(c.NT):
        for j in range(4):
            r = c.acc(0, nt) + 4 * j
            a("v_cvt_pk_bf16_f32 v%d, v%d, v%d", r, r, r + 1)
            a("v_cvt_pk_bf16_f32 v%d, v%d, v%d", r + 1, r + 2, r + 3)
            a("buffer_store_dwordx2 %s, v6, %s, 0 offen offset:%d", vr(r, 2), sr(S_SRDO, 4), (nt * 32 + 8 * j) * 2)
    a.label("%s_done" % name)
    instr_end(a, 5)
    a.label("%s_done2" % name)
    a("s_endpgm")
    return name, c.vEND, c.STAGE * c.NST, 256
```

```python
from common import *

def gen_oproj2(a):
    name = "oproj_kernel"
    NST, KST = 5, 10
    AB, BB = 8192, 64 * 320
    STAGE = AB + BB
    SA, SW, SO = 12, 16, 20
    sW, sMT, sNT, sBR, sLA, sLB, sSOFF, sT0, sT1, sT2 = 24, 25, 26, 27, 28, 29, 30, 31, 32, 33
    vDA, vDB, vRA, vRB = 8, 10, 16, 36
    vFA, vFB, vACC = 44, 60, 68
    VEND = 100
    kernel_header(a, name)
    a("s_cmp_ge_u32 s2, 256")
    a("s_cbranch_scc1 %s_done2", name)
    instr_begin(a)
    a("s_load_dwordx2 s[4:5], s[0:1], 16")
    a("s_load_dwordx2 s[6:7], s[0:1], 40")
    a("s_load_dwordx2 s[8:9], s[0:1], 48")
    a("s_load_dwordx2 s[36:37], s[0:1], 64")
    a("v_lshrrev_b32 v1, 6, v0")
    a("v_and_b32 v2, 63, v0")
    a("s_and_b32 s%d, s2, 7", sT0)
    a("v_readfirstlane_b32 s%d, v1", sW)
    a("s_lshr_b32 s%d, s2, 3", sT1)
    a("s_and_b32 s%d, s%d, 1", sBR, sT0)
    a("s_lshr_b32 s%d, s%d, 1", sMT, sT0)
    a("s_lshl_b32 s%d, s%d, 3", sMT, sMT)
    a("s_lshr_b32 s%d, s%d, 2", sT2, sT1)
    a("s_add_u32 s%d, s%d, s%d", sMT, sMT, sT2)
    a("s_and_b32 s%d, s%d, 3", sNT, sT1)
    a("s_min_u32 s%d, s%d, 3", sT0, sW)
    a("s_lshl_b32 s%d, s%d, 11", sLA, sT0)
    a("s_lshl_b32 s%d, s%d, 4", sT0, sT0)
    a("v_lshrrev_b32 v3, 3, v2")
    a("v_add_u32 v3, s%d, v3", sT0)
    a("v_and_b32 v4, 7, v2")
    a("s_mov_b32 s%d, 1280", sT1)
    for j in range(2):
        a("v_add_u32 v5, %d, v3", 8 * j)
        a("v_bfe_u32 v6, v5, 1, 3")
        a("v_xor_b32 v6, v6, v4")
        a("v_lshlrev_b32 v6, 4, v6")
        a("v_mad_u32_u24 v%d, v5, s%d, v6", vDA + j, sT1)
    a("s_lshl_b32 s%d, s%d, 12", sLB, sW)
    a("s_add_u32 s%d, s%d, %d", sLB, sLB, AB)
    a("s_lshl_b32 s%d, s%d, 8", sT0, sW)
    a("v_add_u32 v3, s%d, v2", sT0)
    a("s_mov_b32 s%d, 3277", sT2)
    for j in range(4):
        a("v_add_u32 v4, %d, v3", 64 * j)
        a("v_mul_u32_u24 v5, s%d, v4", sT2)
        a("v_lshrrev_b32 v5, 16, v5")
        a("v_mul_u32_u24 v6, 20, v5")
        a("v_sub_u32 v6, v4, v6")
        a("v_lshlrev_b32 v6, 4, v6")
        a("v_mad_u32_u24 v%d, v5, s%d, v6", vDB + j, sT1)
    a("s_waitcnt lgkmcnt(0)")
    a("s_cmp_eq_u32 s%d, 0", sBR)
    a("s_cselect_b64 s[6:7], s[4:5], s[6:7]")
    a("s_mov_b32 s%d, %d", sT1, WS_OB)
    a("s_cselect_b32 s%d, %d, s%d", sT1, WS_OA, sT1)
    a("s_mul_i32 s%d, s%d, %d", sT0, sMT, 64 * 1280)
    a("s_add_u32 s%d, s%d, s%d", sT0, sT0, sT1)
    a("s_add_u32 s%d, s36, s%d", SA, sT0)
    a("s_addc_u32 s%d, s37, 0", SA + 1)
    a("s_mov_b32 s%d, %d", SA + 2, 64 * 1280)
    a("s_mov_b32 s%d, 0x00020000", SA + 3)
    a("s_mul_i32 s%d, s%d, 320", sT0, sNT)
    a("s_add_u32 s%d, s6, s%d", SW, sT0)
    a("s_addc_u32 s%d, s7, 0", SW + 1)
    a("s_sub_u32 s%d, %d, s%d", SW + 2, 640 * 1280, sT0)
    a("s_mov_b32 s%d, 0x00020000", SW + 3)
    a("s_mov_b32 s%d, s8", SO)
    a("s_mov_b32 s%d, s9", SO + 1)
    a("s_mov_b32 s%d, %d", SO + 2, 2048 * 2560)
    a("s_mov_b32 s%d, 0x00020000", SO + 3)
    def dma(k):
        st = k % NST
        a("s_lshl_b32 s%d, s42, 7", sSOFF)
        for j in range(2):
            a("s_add_u32 m0, s%d, %d", sLA, st * STAGE + j * 1024)
            a("s_nop 0")
            a("buffer_load_dwordx4 v%d, %s, s%d offen lds", vDA + j, sr(SA, 4), sSOFF)
        a("s_mul_i32 s%d, s42, %d", sSOFF, 64 * 1280)
        for j in range(4):
            a("s_add_u32 m0, s%d, %d", sLB, st * STAGE + j * 1024)
            a("s_nop 0")
            a("buffer_load_dwordx4 v%d, %s, s%d offen lds", vDB + j, sr(SW, 4), sSOFF)
        a("s_add_u32 s42, s42, 1")
        a("s_cmp_eq_u32 s42, 10")
        a("s_cselect_b32 s42, 0, s42")
    a("s_lshr_b32 s42, s2, 3")
    a("s_mul_i32 s42, s42, 3")
    a("s_mul_i32 s43, s42, 6554")
    a("s_lshr_b32 s43, s43, 16")
    a("s_mul_i32 s43, s43, 10")
    a("s_sub_u32 s42, s42, s43")
    a("s_mov_b32 s42, 0")
    for k in range(4):
        dma(k)
    a("v_and_b32 v3, 31, v2")
    a("v_lshrrev_b32 v4, 5, v2")
    a("v_bfe_u32 v5, v3, 1, 3")
    a("v_lshlrev_b32 v3, 7, v3")
    for ks in range(4):
        a("v_add_u32 v6, %d, v4", 2 * ks)
        a("v_xor_b32 v6, v6, v5")
        a("v_lshl_add_u32 v%d, v6, 4, v3", vRA + ks)
        for st in range(1, NST):
            a("v_add_u32 v%d, %d, v%d", vRA + 4 * st + ks, st * STAGE, vRA + ks)
    a("v_bfe_u32 v3, v2, 2, 2")
    a("v_and_b32 v4, 3, v2")
    a("v_bfe_u32 v5, v2, 4, 1")
    a("v_lshrrev_b32 v6, 5, v2")
    a("v_lshl_add_u32 v6, v6, 3, v3")
    a("v_mul_u32_u24 v6, 320, v6")
    a("v_lshlrev_b32 v4, 3, v4")
    a("v_lshl_add_u32 v4, v5, 5, v4")
    a("s_lshl_b32 s%d, s%d, 6", sT0, sW)
    a("v_add3_u32 v6, v6, v4, s%d", sT0)
    a("v_add_u32 v%d, %d, v6", vRB, AB)
    for st in range(1, NST):
        a("v_add_u32 v%d, %d, v%d", vRB + st, st * STAGE, vRB)
    for r in range(32):
        a("v_mov_b32 v%d, 0", vACC + r)
    def reads(st, ks, buf):
        for mt in range(2):
            a("ds_read_b128 %s, v%d offset:%d", vr(vFA + (buf * 2 + mt) * 4, 4), vRA + 4 * st + ks, mt * 4096)
        for j in range(2):
            a("ds_read_b64_tr_b16 %s, v%d offset:%d", vr(vFB + buf * 4 + 2 * j, 2), vRB + st, (16 * ks + 4 * j) * 320)
    for i in range(KST):
        st = i % NST
        a("s_waitcnt vmcnt(%d)", 6 * min(3, KST - 1 - i))
        a("s_barrier")
        if i == 0:
            instr_mark(a, 0)
        reads(st, 0, 0)
        if i + 4 < KST:
            dma(i + 4)
        for ks in range(4):
            buf = ks & 1
            if ks < 3:
                reads(st, ks + 1, buf ^ 1)
                a("s_waitcnt lgkmcnt(4)")
            else:
                a("s_waitcnt lgkmcnt(0)")
            for mt in range(2):
                d = vr(vACC + 16 * mt, 16)
                a("v_mfma_f32_32x32x16_bf16 %s, %s, %s, %s", d, vr(vFB + buf * 4, 4), vr(vFA + (buf * 2 + mt) * 4, 4), d)
    a("s_nop 15")
    a("s_nop 15")
    instr_mark(a, 1)
    CST = 336
    a("s_barrier")
    a("v_and_b32 v3, 31, v2")
    a("v_mul_u32_u24 v6, %d, v3", CST)
    a("v_lshrrev_b32 v7, 5, v2")
    a("v_lshlrev_b32 v7, 3, v7")
    a("s_lshl_b32 s%d, s%d, 6", sT0, sW)
    a("v_add3_u32 v6, v6, v7, s%d", sT0)
    for mt in range(2):
        for j in range(4):
            r = vACC + 16 * mt + 4 * j
            a("v_cvt_pk_bf16_f32 v%d, v%d, v%d", r, r, r + 1)
            a("v_cvt_pk_bf16_f32 v%d, v%d, v%d", r + 1, r + 2, r + 3)
            a("ds_write_b64 v6, %s offset:%d", vr(r, 2), mt * 32 * CST + 16 * j)
    a("s_waitcnt lgkmcnt(0)")
    a("s_barrier")
    a("s_lshl_b32 s%d, s%d, 8", sT0, sW)
    a("v_add_u32 v3, s%d, v2", sT0)
    a("s_lshl_b32 s%d, s%d, 6", sT1, sMT)
    a("s_mul_i32 s34, s%d, 320", sNT)
    a("s_mul_i32 s35, s%d, 1280", sBR)
    a("s_add_u32 s34, s34, s35")
    a("s_mov_b32 s35, 2560")
    for j in range(4):
        a("v_add_u32 v4, %d, v3", 64 * j)
        a("v_mul_u32_u24 v5, s%d, v4", sT2)
        a("v_lshrrev_b32 v5, 16, v5")
        a("v_mul_u32_u24 v6, 20, v5")
        a("v_sub_u32 v6, v4, v6")
        a("v_lshlrev_b32 v6, 4, v6")
        a("v_mul_u32_u24 v7, %d, v5", CST)
        a("v_add_u32 v7, v7, v6")
        a("ds_read_b128 %s, v7", vr(vACC + 4 * j, 4))
        a("v_add_u32 v5, s%d, v5", sT1)
        a("v_mad_u32_u24 v%d, v5, s35, v6", vDB + j)
        a("v_add_u32 v%d, s34, v%d", vDB + j, vDB + j)
    for j in range(4):
        a("s_waitcnt lgkmcnt(%d)", 3 - j)
        a("buffer_store_dwordx4 %s, v%d, %s, 0 offen", vr(vACC + 4 * j, 4), vDB + j, sr(SO, 4))
    a.label("%s_done" % name)
    instr_end(a, 5)
    a.label("%s_done2" % name)
    a("s_endpgm")
    return name, VEND, NST * STAGE, 320
```

```python
from common import *
import struct, math

def f32bits(x):
    return struct.unpack('<I', struct.pack('<f', x))[0]

def gen_local(a):
    name = "local_kernel"
    kernel_header(a, name)
    a("s_cmp_ge_u32 s2, 256")
    a("s_cbranch_scc1 %s_done2", name)
    instr_begin(a)
    a("s_load_dwordx2 s[4:5], s[0:1], 64")
    a("v_and_b32 v1, 31, v0")
    a("v_lshrrev_b32 v2, 5, v0")
    a("s_lshl_b32 s3, s2, 3")
    a("v_add_u32 v2, s3, v2")
    a("v_mul_u32_u24 v1, 40, v1")
    a("s_waitcnt lgkmcnt(0)")
    a("s_mov_b32 s8, s4")
    a("s_mov_b32 s9, s5")
    a("s_mov_b32 s10, %d", 2048 * 3840)
    a("s_mov_b32 s11, 0x00020000")
    a("s_add_u32 s12, s4, %d", WS_OA)
    a("s_addc_u32 s13, s5, 0")
    a("s_mov_b32 s14, %d", 2048 * 1280)
    a("s_mov_b32 s15, 0x00020000")
    a("s_mov_b32 s16, 3840")
    Q, K, V = 16, 26, 106
    a("v_mad_u32_u24 v3, v2, s16, v1")
    for i in range(5):
        a("buffer_load_dwordx2 %s, v3, s[8:11], 0 offen offset:%d", vr(Q + 2 * i, 2), 8 * i)
    for w in range(8):
        a("v_subrev_u32 v4, %d, v2", 2 * w)
        a("v_max_i32 v4, 0, v4")
        a("v_mad_u32_u24 v%d, v4, s16, v1", 5 + w)
    for w in range(8):
        for i in range(5):
            a("buffer_load_dwordx2 %s, v%d, s[8:11], 0 offen offset:%d", vr(K + 10 * w + 2 * i, 2), 5 + w, 1280 + 8 * i)
    for w in range(8):
        for i in range(5):
            a("buffer_load_dwordx2 %s, v%d, s[8:11], 0 offen offset:%d", vr(V + 10 * w + 2 * i, 2), 5 + w, 2560 + 8 * i)
    L = 186
    a("s_waitcnt vmcnt(40)")
    for w in range(8):
        a("v_mov_b32 v%d, 0", L + w)
    for i in range(10):
        for w in range(8):
            a("v_dot2_f32_bf16 v%d, v%d, v%d, v%d", L + w, Q + i, K + 10 * w + i, L + w)
    a("s_nop 3")
    sc = (20.0 ** -0.5) * math.log2(math.e)
    a("s_mov_b32 s17, 0x%08x", f32bits(sc))
    a("v_mov_b32 v13, 0x%08x", f32bits(-1e30))
    for w in range(8):
        a("v_mul_f32 v%d, s17, v%d", L + w, L + w)
    for w in range(1, 8):
        a("v_cmp_le_u32 vcc, %d, v2", 2 * w)
        a("s_nop 1")
        a("v_cndmask_b32 v%d, v13, v%d, vcc", L + w, L + w)
    a("v_max3_f32 v14, v%d, v%d, v%d", L, L + 1, L + 2)
    a("v_max3_f32 v14, v14, v%d, v%d", L + 3, L + 4)
    a("v_max3_f32 v14, v14, v%d, v%d", L + 5, L + 6)
    a("v_max_f32 v14, v14, v%d", L + 7)
    for w in range(8):
        a("v_sub_f32 v%d, v%d, v14", L + w, L + w)
    for w in range(8):
        a("v_exp_f32 v%d, v%d", L + w, L + w)
    a("s_nop 0")
    a("v_add_f32 v15, v%d, v%d", L, L + 1)
    for w in range(2, 8):
        a("v_add_f32 v15, v15, v%d", L + w)
    a("v_rcp_f32 v15, v15")
    a("s_nop 0")
    for w in range(8):
        a("v_mul_f32 v%d, v%d, v15", L + w, L + w)
    O = 196
    for d in range(20):
        a("v_mov_b32 v%d, 0", O + d)
    a("s_waitcnt vmcnt(0)")
    for w in range(8):
        for i in range(10):
            src = V + 10 * w + i
            a("v_lshlrev_b32 v4, 16, v%d", src)
            a("v_and_b32 v5, 0xffff0000, v%d", src)
            a("v_fmac_f32 v%d, v%d, v4", O + 2 * i, L + w)
            a("v_fmac_f32 v%d, v%d, v5", O + 2 * i + 1, L + w)
    for i in range(10):
        a("v_cvt_pk_bf16_f32 v%d, v%d, v%d", Q + i, O + 2 * i, O + 2 * i + 1)
    a("s_mov_b32 s16, 1280")
    a("v_mad_u32_u24 v3, v2, s16, v1")
    for i in range(5):
        a("buffer_store_dwordx2 %s, v3, s[12:15], 0 offen offset:%d", vr(Q + 2 * i, 2), 8 * i)
    a.label("%s_done" % name)
    instr_end(a, 5)
    a.label("%s_done2" % name)
    a("s_endpgm")
    return name, 216, 0, 256

STG = 24576
THRESH = 60.0

def gen_attn(a):
    name = "attn_kernel"
    kernel_header(a, name)
    SKV, SQ, SO = 8, 12, 16
    sWAVE, sWQ, sKH, sHEAD, sQB = 20, 21, 22, 23, 24
    sSTG = 25
    sDST = 26
    sSOFF = 27
    sCNT = 28
    sTH = 29
    sT0, sT1 = 30, 31
    vDMA = 2
    vK1, vK2, vV = 3, 4, 5
    cK1, cK2, cV = 6, 7, 8
    nK1, nK2 = 9, 10
    vT0, vT1, vT2 = 11, 12, 13
    vMX = 192
    QF = 16
    KF = 32
    VF = 48
    NM = 64
    OO = 96
    SS = 128
    VEND = 196
    def qf(qt, step): return QF + (qt * 2 + step) * 4
    def nm(qt): return NM + 16 * qt
    def oo(qt): return OO + 16 * qt
    def ss(qt, buf): return SS + (qt * 2 + buf) * 16

    a("s_cmp_ge_u32 s2, 256")
    a("s_cbranch_scc1 %s_done2", name)
    instr_begin(a)
    a("s_load_dwordx2 s[4:5], s[0:1], 64")
    a("v_lshrrev_b32 v1, 6, v0")
    a("v_and_b32 v0, 63, v0")
    a("s_and_b32 s%d, s2, 7", sT0)
    a("v_readfirstlane_b32 s%d, v1", sWAVE)
    a("s_lshr_b32 s%d, s2, 3", sT1)
    a("s_lshl_b32 s%d, s%d, 2", sHEAD, sT0)
    a("s_lshr_b32 s%d, s%d, 3", sT0, sT1)
    a("s_add_u32 s%d, s%d, s%d", sHEAD, sHEAD, sT0)
    a("s_and_b32 s%d, s%d, 7", sQB, sT1)
    a("s_and_b32 s%d, s%d, 3", sWQ, sWAVE)
    a("s_lshr_b32 s%d, s%d, 2", sKH, sWAVE)
    a("s_mov_b32 s%d, 0x%08x", sTH, f32bits(THRESH))
    a("s_waitcnt lgkmcnt(0)")
    a("s_mul_i32 s%d, s%d, %d", sT0, sHEAD, 64 * 3072)
    a("s_add_u32 s%d, s%d, %d", sT0, sT0, WS_KV)
    a("s_add_u32 s%d, s4, s%d", SKV, sT0)
    a("s_addc_u32 s%d, s5, 0", SKV + 1)
    a("s_mov_b32 s%d, %d", SKV + 2, 64 * 3072)
    a("s_mov_b32 s%d, 0x00020000", SKV + 3)
    a("s_mul_i32 s%d, s%d, 98304", sT0, sKH)
    a("s_mul_i32 s%d, s%d, 3072", sT1, sWQ)
    a("s_add_u32 s%d, s%d, s%d", sT0, sT0, sT1)
    a("v_lshlrev_b32 v%d, 4, v0", vDMA)
    a("v_add_u32 v%d, s%d, v%d", vDMA, sT0, vDMA)
    a("s_mul_i32 s%d, s%d, 12288", sDST, sKH)
    a("s_add_u32 s%d, s%d, s%d", sDST, sDST, sT1)
    sDST0 = 32
    a("s_mov_b32 s%d, s%d", sDST0, sDST)
    for j in range(3):
        a("s_add_u32 m0, s%d, %d", sDST0, j * 1024)
        a("s_mov_b32 s%d, %d", sT0, j * 1024)
        a("buffer_load_dwordx4 v%d, %s, s%d offen lds", vDMA, sr(SKV, 4), sT0)
    a("s_add_u32 s%d, s4, %d", SQ, WS_QB)
    a("s_addc_u32 s%d, s5, 0", SQ + 1)
    a("s_mov_b32 s%d, %d", SQ + 2, 2048 * 1280)
    a("s_mov_b32 s%d, 0x00020000", SQ + 3)
    a("s_add_u32 s%d, s4, %d", SO, WS_OB)
    a("s_addc_u32 s%d, s5, 0", SO + 1)
    a("s_mov_b32 s%d, %d", SO + 2, 2048 * 1280)
    a("s_mov_b32 s%d, 0x00020000", SO + 3)
    a("s_load_dwordx2 s[52:53], s[0:1], 16")
    a("s_load_dwordx2 s[56:57], s[0:1], 40")
    a("v_min_u32 v1, 24, v0")
    a("v_lshlrev_b32 v1, 7, v1")
    a("s_mov_b32 s54, %d", 640 * 1280)
    a("s_mov_b32 s55, 0x00020000")
    a("s_mov_b32 s58, %d", 640 * 1280)
    a("s_mov_b32 s59, 0x00020000")
    a("v_mov_b32 v195, v1")
    a("s_mul_i32 s51, s2, 3200")
    a("s_waitcnt lgkmcnt(0)")
    a("v_and_b32 v%d, 31, v0", vT0)
    a("v_lshrrev_b32 v%d, 5, v0", vT1)
    a("s_lshl_b32 s%d, s%d, 8", sT0, sQB)
    a("s_lshl_b32 s%d, s%d, 6", sT1, sWQ)
    a("s_add_u32 s%d, s%d, s%d", sT0, sT0, sT1)
    a("v_add_u32 v%d, s%d, v%d", vT2, sT0, vT0)
    a("s_mul_i32 s%d, s%d, 81920", sT0, sHEAD)
    a("v_mov_b32 v14, s%d", sT0)
    a("v_mad_u32_u24 v%d, v%d, 40, v14", vT2, vT2)
    a("v_lshl_add_u32 v14, v%d, 4, v%d", vT1, vT2)
    a("v_add_u32 v15, %d, v14", 32 * 40)
    a("v_add_u32 v1, %d, v%d", 32 * 40, vT2)
    for qt in range(2):
        a("buffer_load_dwordx2 %s, v%d, %s, 0 offen", vr(qf(qt, 0), 2), 14 + qt, sr(SQ, 4))
        a("buffer_load_dwordx2 %s, v%d, %s, 0 offen offset:8", vr(qf(qt, 0) + 2, 2), 14 + qt, sr(SQ, 4))
        a("buffer_load_dwordx2 %s, v%d, %s, 0 offen offset:32", vr(qf(qt, 1), 2), vT2 if qt == 0 else 1, sr(SQ, 4))
    def dma(stage_lds_off_reg=None, imm_lds=None, soff_imm=None):
        pass
    SA = 36
    LREG = 3 * STG
    a("s_mov_b32 s%d, s4", SA)
    a("s_mov_b32 s%d, s5", SA + 1)
    a("s_mov_b32 s%d, %d", SA + 2, 2048 * 3840)
    a("s_mov_b32 s%d, 0x00020000", SA + 3)
    a("s_add_u32 s%d, s4, %d", SA + 4, WS_OA)
    a("s_addc_u32 s%d, s5, 0", SA + 5)
    a("s_mov_b32 s%d, %d", SA + 6, 2048 * 1280)
    a("s_mov_b32 s%d, 0x00020000", SA + 7)
    a("s_lshl_b32 s44, s2, 3")
    a("s_mul_i32 s%d, s%d, 12288", sT0, sKH)
    a("v_lshlrev_b32 v%d, 4, v0", vK1)
    a("v_add_u32 v%d, s%d, v%d", vK1, sT0, vK1)
    a("v_lshlrev_b32 v%d, 4, v%d", vK2, vT0)
    a("v_add_u32 v%d, s%d, v%d", vK2, sT0, vK2)
    a("v_add_u32 v%d, 1024, v%d", vK2, vK2)
    a("v_min_u32 v%d, 23, v%d", vV, vT0)
    a("v_lshlrev_b32 v%d, 4, v%d", vV, vV)
    a("v_mul_u32_u24 v14, 384, v%d", vT1)
    a("v_add_u32 v%d, v%d, v14", vV, vV)
    a("v_add_u32 v%d, s%d, v%d", vV, sT0, vV)
    a("v_add_u32 v%d, 1536, v%d", vV, vV)
    sMODE = 50
    a("s_mov_b32 s%d, 0", sMODE)
    a.label("%s_restart" % name)
    a("s_lshl_b32 s45, s%d, 1", sWAVE)
    a("s_cmp_eq_u32 s%d, 0", sMODE)
    a("s_cbranch_scc1 %s_skip_s0", name)
    for g in range(2):
        if g == 1:
            a.label("%s_skip_s0" % name)
        for j in range(3):
            a("s_add_u32 m0, s%d, %d", sDST0, g * STG + j * 1024)
            a("s_mov_b32 s%d, %d", sT0, g * 12288 + j * 1024)
            a("buffer_load_dwordx4 v%d, %s, s%d offen lds", vDMA, sr(SKV, 4), sT0)
    for r in range(32):
        a("v_mov_b32 v%d, 0", OO + r)
    a("s_waitcnt vmcnt(3)")
    a("v_cmp_gt_u32 vcc, 32, v0")
    a("s_nop 1")
    for qt in range(2):
        b = qf(qt, 1)
        a("v_cndmask_b32 v%d, 0, v%d, vcc", b, b)
        a("v_cndmask_b32 v%d, 0, v%d, vcc", b + 1, b + 1)
        a("v_mov_b32 v%d, 0", b + 2)
        a("v_mov_b32 v%d, 0", b + 3)
    a("s_waitcnt vmcnt(3)")
    a("s_barrier")
    a("ds_read_b128 %s, v%d", vr(KF, 4), vK1)
    a("ds_read_b128 %s, v%d", vr(KF + 4, 4), vK2)
    a("ds_read_b128 %s, v%d offset:3072", vr(KF + 8, 4), vK1)
    a("ds_read_b128 %s, v%d offset:3072", vr(KF + 12, 4), vK2)
    for r in range(8):
        a("v_mov_b32 v%d, 0", VF + 8 + r)
        a("v_mov_b32 v%d, 0", ss(1, 1) + r)
    a("s_waitcnt lgkmcnt(2)")
    for qt in range(2):
        d = vr(ss(qt, 0), 16)
        a("v_mfma_f32_32x32x16_bf16 %s, %s, %s, %s", d, vr(KF, 4), vr(qf(qt, 0), 4), vr(oo(qt), 16))
        a("v_mfma_f32_32x32x16_bf16 %s, %s, %s, %s", d, vr(KF + 4, 4), vr(qf(qt, 1), 4), d)
    a("s_nop 15")
    a("s_nop 15")
    def tilemax_ops(S, t):
        ops = ["v_max3_f32 v%d, v%d, v%d, v%d" % (t, S, S + 1, S + 2)]
        for i in range(3, 15, 2):
            ops.append("v_max3_f32 v%d, v%d, v%d, v%d" % (t, t, S + i, S + i + 1))
        ops.append("v_max_f32 v%d, v%d, v%d" % (t, t, S + 15))
        return ops
    for qt in range(2):
        S = ss(qt, 0)
        for o in tilemax_ops(S, vT0):
            a(o)
        a("v_mov_b32 v%d, v%d", vT1, vT0)
        a("s_nop 1")
        a("v_permlane32_swap_b32 v%d, v%d", vT0, vT1)
        a("v_max_f32 v%d, v%d, v%d", vT0, vT0, vT1)
        for i in range(16):
            a("v_sub_f32 v%d, v%d, v%d", S + i, S + i, vT0)
        for i in range(16):
            a("v_sub_f32 v%d, 0, v%d", nm(qt) + i, vT0)
    a("s_mov_b32 s%d, 0", sSTG)
    a("s_add_u32 s%d, s%d, %d", sDST, sDST0, 2 * STG)
    a("s_mov_b32 s%d, %d", sSOFF, 2 * 12288)
    a("s_mov_b32 s%d, 8", sCNT)
    a("v_mov_b32 v%d, v%d", cK1, vK1)
    a("v_mov_b32 v%d, v%d", cK2, vK2)
    a("v_mov_b32 v%d, v%d", cV, vV)
    a("v_add_u32 v%d, %d, v%d", nK1, STG, vK1)
    a("v_add_u32 v%d, %d, v%d", nK2, STG, vK2)
    rare = []
    def pv(qt, sbuf, vbuf, k):
        o = vr(oo(qt), 16)
        return "v_mfma_f32_32x32x16_bf16 %s, %s, %s, %s" % (o, vr(VF + 8 * vbuf + 4 * k, 4), vr(ss(qt, sbuf) + 4 * k, 4), o)
    def qk(qt, sbuf, kbuf, k):
        d = vr(ss(qt, sbuf), 16)
        c = vr(nm(qt), 16) if k == 0 else d
        return "v_mfma_f32_32x32x16_bf16 %s, %s, %s, %s" % (d, vr(KF + 8 * kbuf + 4 * k, 4), vr(qf(qt, k), 4), c)
    a("s_mov_b64 vcc, 0")
    instr_mark(a, 0)
    a0 = a
    def emit_loop(fast, sfx):
        def a(s, *args):
            if s is not None:
                a0(s, *args)
        a.label = a0.label
        a.comment = a0.comment
        a.label("%s_loop%s" % (name, sfx))
        for tt in range(4):
            cur = tt & 1
            nxt = cur ^ 1
            a.comment("---- tile %d" % tt)
            if tt == 2:
                a("s_waitcnt vmcnt(0)")
                a("s_barrier")
                for j in range(3):
                    a("s_add_u32 m0, s%d, %d", sDST, j * 1024)
                    a("s_add_u32 s%d, s%d, %d", sT0, sSOFF, j * 1024)
                    a("buffer_load_dwordx4 v%d, %s, s%d offen lds", vDMA, sr(SKV, 4), sT0)
                a("s_cmp_lg_u32 s%d, 3", sCNT)
                a("s_cbranch_scc1 %s_nowarm%s", name, sfx)
                a("s_cmp_lg_u32 s%d, 7", sWAVE)
                a("s_cbranch_scc1 %s_nowarm%s", name, sfx)
                a("buffer_load_dword v194, v195, s[52:55], s51 offen")
                a("buffer_load_dword v194, v195, s[56:59], s51 offen")
                a.label("%s_nowarm%s" % (name, sfx))
                a("s_cmp_lt_u32 s%d, 4", sCNT)
                a("s_cbranch_scc1 %s_nostage%s", name, sfx)
                for j in range(2):
                    a("s_add_u32 s46, s45, %d", j)
                    a("s_min_u32 s46, s46, 64")
                    a("s_lshl_b32 s46, s46, 10")
                    a("v_lshl_add_u32 v%d, v0, 4, s46", vT0)
                    a("s_mov_b32 s47, 52429")
                    a("v_lshrrev_b32 v%d, 9, v%d", vT1, vT0)
                    a("v_mul_u32_u24 v%d, s47, v%d", vT1, vT1)
                    a("v_lshrrev_b32 v%d, 18, v%d", vT1, vT1)
                    a("v_mul_u32_u24 v%d, 2560, v%d", vT2, vT1)
                    a("v_sub_u32 v%d, v%d, v%d", vT2, vT0, vT2)
                    a("v_add_u32 v%d, 1280, v%d", vT2, vT2)
                    a("v_add_u32 v%d, s44, v%d", vT1, vT1)
                    a("v_subrev_u32 v%d, 14, v%d", vT1, vT1)
                    a("v_max_i32 v%d, 0, v%d", vT1, vT1)
                    a("v_subrev_u32 v14, 56320, v%d", vT0)
                    a("v_lshrrev_b32 v15, 8, v14")
                    a("v_mul_u32_u24 v15, s47, v15")
                    a("v_lshrrev_b32 v15, 18, v15")
                    a("v_mul_u32_u24 v1, 1280, v15")
                    a("v_sub_u32 v14, v14, v1")
                    a("v_add_u32 v15, s44, v15")
                    a("s_mov_b32 s47, 56320")
                    a("v_cmp_le_u32 s[48:49], s47, v%d", vT0)
                    a("s_add_u32 m0, s46, %d", LREG)
                    a("s_nop 1")
                    a("v_cndmask_b32 v%d, v%d, v15, s[48:49]", vT1, vT1)
                    a("v_cndmask_b32 v%d, v%d, v14, s[48:49]", vT2, vT2)
                    a("s_mov_b32 s47, 3840")
                    a("v_mad_u32_u24 v%d, v%d, s47, v%d", vT0, vT1, vT2)
                    a("buffer_load_dwordx4 v%d, %s, 0 offen lds", vT0, sr(SA, 4))
                a("s_add_u32 s45, s45, 16")
                a.label("%s_nostage%s" % (name, sfx))
            for qt in range(2):
                S = ss(qt, cur)
                if qt == 0:
                    a("ds_read_b128 %s, v%d offset:%d", vr(VF + 8 * cur, 4), cV, tt * 3072)
                    a("ds_read_b128 %s, v%d offset:%d", vr(VF + 8 * cur + 4, 4), cV, tt * 3072 + 768)
                    m = [pv(1, nxt, nxt, 0), pv(1, nxt, nxt, 1), qk(0, nxt, nxt, 0), qk(0, nxt, nxt, 1)]
                else:
                    if tt < 2:
                        a("ds_read_b128 %s, v%d offset:%d", vr(KF + 8 * cur, 4), cK1, (tt + 2) * 3072)
                        a("ds_read_b128 %s, v%d offset:%d", vr(KF + 8 * cur + 4, 4), cK2, (tt + 2) * 3072)
                    else:
                        a("ds_read_b128 %s, v%d offset:%d", vr(KF + 8 * cur, 4), nK1, (tt - 2) * 3072)
                        a("ds_read_b128 %s, v%d offset:%d", vr(KF + 8 * cur + 4, 4), nK2, (tt - 2) * 3072)
                    m = [pv(0, cur, cur, 0), pv(0, cur, cur, 1), qk(1, nxt, nxt, 0), qk(1, nxt, nxt, 1)]
                if qt == 0:
                    mx = tilemax_ops(ss(1, cur), vMX + 1)
                    cmpop = "v_cmp_lt_f32 vcc, s%d, v%d" % (sTH, vMX + 1)
                else:
                    mx = tilemax_ops(ss(0, nxt), vMX + 0)
                    cmpop = "v_cmp_lt_f32 vcc, s%d, v%d" % (sTH, vMX + 0)
                lr = "%s_rare_%d_%d" % (name, tt, qt)
                lb = "%s_back_%d_%d" % (name, tt, qt)
                if fast:
                    mx = [None] * 8
                    cmpop = None
                else:
                    a("s_cbranch_vccnz %s", lr)
                    a.label(lb)
                    rare.append((lr, lb, qt, cur, nxt))
                e = lambda i: "v_exp_f32 v%d, v%d" % (S + i, S + i)
                cv = lambda k: "v_cvt_pk_bf16_f32 v%d, v%d, v%d" % (S + k, S + 2 * k, S + 2 * k + 1)
                a(e(0)); a(e(1))
                if qt == 1:
                    a("s_waitcnt lgkmcnt(2)")
                a(m[0])
                a(e(2)); a(mx[0]); a(e(3)); a(mx[1])
                a(e(4)); a(cv(0))
                a(m[1])
                a(e(5)); a(mx[2]); a(e(6)); a(cv(1)); a(e(7)); a(mx[3])
                if qt == 0:
                    a("s_waitcnt lgkmcnt(2)")
                a(m[2])
                a(e(8)); a(cv(2)); a(e(9)); a(mx[4]); a(e(10)); a(cv(3)); a(e(11)); a(mx[5])
                a(m[3])
                a(e(12)); a(cv(4)); a(e(13)); a(mx[6]); a(e(14)); a(cv(5)); a(e(15)); a(mx[7])
                a(cv(6)); a(cmpop); a(cv(7))
        a("s_add_u32 s%d, s%d, %d", sSTG, sSTG, STG)
        a("s_cmp_eq_u32 s%d, %d", sSTG, 3 * STG)
        a("s_cselect_b32 s%d, 0, s%d", sSTG, sSTG)
        a("s_add_u32 s%d, s%d, %d", sT0, sSTG, STG)
        a("s_cmp_eq_u32 s%d, %d", sT0, 3 * STG)
        a("s_cselect_b32 s%d, 0, s%d", sT0, sT0)
        a("s_add_u32 s%d, s%d, %d", sT1, sT0, STG)
        a("s_cmp_eq_u32 s%d, %d", sT1, 3 * STG)
        a("s_cselect_b32 s%d, 0, s%d", sT1, sT1)
        a("s_add_u32 s%d, s%d, s%d", sDST, sDST0, sT1)
        a("s_add_u32 s%d, s%d, 12288", sSOFF, sSOFF)
        a("v_add_u32 v%d, s%d, v%d", cK1, sSTG, vK1)
        a("v_add_u32 v%d, s%d, v%d", cK2, sSTG, vK2)
        a("v_add_u32 v%d, s%d, v%d", cV, sSTG, vV)
        a("v_add_u32 v%d, s%d, v%d", nK1, sT0, vK1)
        a("v_add_u32 v%d, s%d, v%d", nK2, sT0, vK2)
        a("s_sub_u32 s%d, s%d, 1", sCNT, sCNT)
        a("s_cmp_lg_u32 s%d, 0", sCNT)
        a("s_cbranch_scc1 %s_loop%s", name, sfx)

    a("s_cmp_lg_u32 s%d, 0", sMODE)
    a("s_cbranch_scc1 %s_safe", name)
    emit_loop(True, "f")
    a("s_branch %s_join", name)
    a.label("%s_safe" % name)
    emit_loop(False, "s")
    a.label("%s_join" % name)
    a(pv(1, 1, 1, 0))
    a(pv(1, 1, 1, 1))
    instr_mark(a, 1)
    a("s_waitcnt vmcnt(0) lgkmcnt(0)")
    a("s_nop 15")
    a("s_nop 15")
    FLAG = 3 * STG + 66560
    a("s_mov_b32 s46, 0x%08x", f32bits(2.0 ** 100))
    a("v_mov_b32 v%d, 0", vT0)
    for qt in range(2):
        for r in range(0, 8, 2):
            a("v_max3_f32 v%d, |v%d|, |v%d|, v%d", vT0, oo(qt) + r, oo(qt) + r + 1, vT0)
        a("v_cmp_nlt_f32 vcc, |v%d|, s46", oo(qt) + 8)
        a("s_mov_b64 s[%d:%d], vcc", 84 + 2 * qt, 85 + 2 * qt)
    a("v_cmp_nlt_f32 vcc, v%d, s46", vT0)
    a("v_cmp_u_f32 s[88:89], v%d, v%d", oo(0), oo(1))
    a("s_or_b64 vcc, vcc, s[84:85]")
    a("s_or_b64 vcc, vcc, s[86:87]")
    a("s_or_b64 vcc, vcc, s[88:89]")
    a("s_cselect_b32 s46, 1, 0")
    a("s_lshl_b32 s47, s%d, 2", sWAVE)
    a("s_add_u32 s47, s47, %d", FLAG)
    a("v_mov_b32 v%d, s47", vT1)
    a("v_mov_b32 v%d, s46", vT2)
    a("ds_write_b32 v%d, v%d", vT1, vT2)
    a("s_waitcnt lgkmcnt(0)")
    a("s_barrier")
    a("s_cmp_lg_u32 s%d, 0", sMODE)
    a("s_cbranch_scc1 %s_novote", name)
    a("v_and_b32 v%d, 7, v0", vT1)
    a("v_lshlrev_b32 v%d, 2, v%d", vT1, vT1)
    a("v_add_u32 v%d, %d, v%d", vT1, FLAG, vT1)
    a("ds_read_b32 v%d, v%d", vT2, vT1)
    a("s_waitcnt lgkmcnt(0)")
    a("v_cmp_ne_u32 vcc, 0, v%d", vT2)
    a("s_cbranch_vccz %s_novote", name)
    a("s_mov_b32 s%d, 1", sMODE)
    a("s_barrier")
    a("s_branch %s_restart", name)
    a.label("%s_novote" % name)
    a("s_mul_i32 s%d, s%d, %d", sT0, sWQ, 2 * 13 * 256)
    a("v_lshlrev_b32 v%d, 2, v0", vT2)
    a("v_add_u32 v%d, s%d, v%d", vT2, sT0, vT2)
    a("s_cmp_eq_u32 s%d, 0", sKH)
    a("s_cbranch_scc1 %s_comb0", name)
    for qt in range(2):
        for r in range(12):
            a("ds_write_b32 v%d, v%d offset:%d", vT2, oo(qt) + r, (qt * 13 + r) * 256)
        a("ds_write_b32 v%d, v%d offset:%d", vT2, nm(qt), (qt * 13 + 12) * 256)
    a("s_waitcnt lgkmcnt(0)")
    a("s_barrier")
    a("s_branch %s_local", name)
    a.label("%s_comb0" % name)
    a("s_barrier")
    X = SS
    for qt in range(2):
        for r in range(13):
            a("ds_read_b32 v%d, v%d offset:%d", X + qt * 16 + r, vT2, (qt * 13 + r) * 256)
    a("v_and_b32 v%d, 31, v0", vT0)
    a("v_lshrrev_b32 v%d, 5, v0", vT1)
    a("s_lshl_b32 s%d, s%d, 8", sT0, sQB)
    a("s_lshl_b32 s%d, s%d, 6", sT1, sWQ)
    a("s_add_u32 s%d, s%d, s%d", sT0, sT0, sT1)
    a("v_add_u32 v%d, s%d, v%d", vT0, sT0, vT0)
    a("s_mov_b32 s%d, 1280", sT1)
    a("s_mul_i32 s%d, s%d, 40", sT0, sHEAD)
    a("v_lshlrev_b32 v%d, 3, v%d", vT1, vT1)
    a("v_add_u32 v%d, s%d, v%d", vT1, sT0, vT1)
    a("v_mad_u32_u24 v14, v%d, s%d, v%d", vT0, sT1, vT1)
    a("v_add_u32 v15, %d, v14", 32 * 1280)
    a("s_waitcnt lgkmcnt(0)")
    for qt in range(2):
        x = X + qt * 16
        o = oo(qt)
        a("v_min_f32 v%d, v%d, v%d", vT0, nm(qt), x + 12)
        a("v_sub_f32 v%d, v%d, v%d", vT1, vT0, nm(qt))
        a("v_sub_f32 v%d, v%d, v%d", vT2, vT0, x + 12)
        a("v_exp_f32 v%d, v%d", vT1, vT1)
        a("v_exp_f32 v%d, v%d", vT2, vT2)
        a("s_nop 0")
        for r in range(12):
            a("v_mul_f32 v%d, v%d, v%d", o + r, o + r, vT1)
            a("v_fmac_f32 v%d, v%d, v%d", o + r, x + r, vT2)
        a("v_mov_b32 v%d, v%d", vT0, o + 8)
        a("v_mov_b32 v%d, v%d", vT1, o + 8)
        a("s_nop 1")
        a("v_permlane32_swap_b32 v%d, v%d", vT0, vT1)
        a("v_rcp_f32 v%d, v%d", vT1, vT1)
        a("s_nop 0")
        for r in range(12):
            a("v_mul_f32 v%d, v%d, v%d", o + r, o + r, vT1)
        for j in range(3):
            a("v_cvt_pk_bf16_f32 v%d, v%d, v%d", o + 4 * j, o + 4 * j, o + 4 * j + 1)
            a("v_cvt_pk_bf16_f32 v%d, v%d, v%d", o + 4 * j + 1, o + 4 * j + 2, o + 4 * j + 3)
        for j in range(2):
            a("buffer_store_dwordx2 %s, v%d, %s, 0 offen offset:%d", vr(o + 4 * j, 2), 14 + qt, sr(SO, 4), 16 * j)
    a("v_cmp_gt_u32 vcc, 32, v0")
    a("s_and_saveexec_b64 s[34:35], vcc")
    a("s_cbranch_execz %s_st_skip", name)
    for qt in range(2):
        a("buffer_store_dwordx2 %s, v%d, %s, 0 offen offset:%d", vr(oo(qt) + 8, 2), 14 + qt, sr(SO, 4), 32)
    a.label("%s_st_skip" % name)
    a("s_mov_b64 exec, s[34:35]")
    a("s_nop 1")
    a.label("%s_local" % name)
    LQ, LK, LV = 64, 70, 118
    LL, LO = 32, 48
    a("v_lshrrev_b32 v28, 1, v0")
    a("v_mul_u32_u24 v28, 40, v28")
    a("v_and_b32 v30, 1, v0")
    a("v_mad_u32_u24 v30, v30, 24, v28")
    sc = (20.0 ** -0.5) * math.log2(math.e)
    a("s_add_u32 s46, s44, s%d", sWAVE)
    a("s_mul_i32 s47, s%d, 1280", sWAVE)
    a("s_add_u32 s47, s47, %d", LREG + 56320)
    a("v_add_u32 v29, s47, v30")
    for i in range(3):
        a("ds_read_b64 %s, v29 offset:%d", vr(LQ + 2 * i, 2), 8 * i)
    a("s_mul_i32 s47, s%d, 2560", sWAVE)
    a("s_add_u32 s47, s47, %d", LREG)
    a("v_add_u32 v29, s47, v30")
    for w in range(8):
        for i in range(3):
            a("ds_read_b64 %s, v29 offset:%d", vr(LK + 6 * w + 2 * i, 2), (14 - 2 * w) * 2560 + 8 * i)
        if w % 4 == 3:
            a("s_waitcnt lgkmcnt(3)")
    for w in range(8):
        a("v_mov_b32 v%d, 0", LL + w)
    for d in range(12):
        a("v_mov_b32 v%d, 0", LO + d)
    a("v_and_b32 v60, 1, v0")
    a("v_cmp_eq_u32 vcc, 0, v60")
    a("s_waitcnt lgkmcnt(0)")
    a("v_cndmask_b32 v%d, 0, v%d, vcc", LQ + 4, LQ + 4)
    a("v_cndmask_b32 v%d, 0, v%d, vcc", LQ + 5, LQ + 5)
    for w in range(8):
        for i in range(3):
            a("ds_read_b64 %s, v29 offset:%d", vr(LV + 6 * w + 2 * i, 2), (14 - 2 * w) * 2560 + 1280 + 8 * i)
        if w % 4 == 3:
            a("s_waitcnt lgkmcnt(3)")
    for i in range(6):
        for w in range(8):
            a("v_dot2_f32_bf16 v%d, v%d, v%d, v%d", LL + w, LQ + i, LK + 6 * w + i, LL + w)
    a("s_nop 3")
    for w in range(8):
        a("v_add_f32_dpp v%d, v%d, v%d quad_perm:[1,0,3,2] row_mask:0xf bank_mask:0xf", 40 + w, LL + w, LL + w)
    a("s_mov_b32 s47, 0x%08x", f32bits(sc))
    a("v_mov_b32 v29, 0x%08x", f32bits(-1e30))
    for w in range(8):
        a("v_mul_f32 v%d, s47, v%d", LL + w, 40 + w)
    for w in range(1, 8):
        a("s_cmp_ge_u32 s46, %d", 2 * w)
        a("s_cbranch_scc1 %s_lv_%d", name, w)
        a("v_mov_b32 v%d, v29", LL + w)
        a.label("%s_lv_%d" % (name, w))
    a("v_max3_f32 v60, v%d, v%d, v%d", LL, LL + 1, LL + 2)
    a("v_max3_f32 v60, v60, v%d, v%d", LL + 3, LL + 4)
    a("v_max3_f32 v60, v60, v%d, v%d", LL + 5, LL + 6)
    a("v_max_f32 v60, v60, v%d", LL + 7)
    for w in range(8):
        a("v_sub_f32 v%d, v%d, v60", LL + w, LL + w)
    for w in range(8):
        a("v_exp_f32 v%d, v%d", LL + w, LL + w)
    a("s_nop 0")
    a("v_add_f32 v61, v%d, v%d", LL, LL + 1)
    for w in range(2, 8):
        a("v_add_f32 v61, v61, v%d", LL + w)
    a("v_rcp_f32 v61, v61")
    a("s_nop 0")
    for w in range(8):
        a("v_mul_f32 v%d, v%d, v61", LL + w, LL + w)
    a("s_waitcnt lgkmcnt(0)")
    for w in range(8):
        for i in range(6):
            src = LV + 6 * w + i
            a("v_lshlrev_b32 v62, 16, v%d", src)
            a("v_and_b32 v63, 0xffff0000, v%d", src)
            a("v_fmac_f32 v%d, v%d, v62", LO + 2 * i, LL + w)
            a("v_fmac_f32 v%d, v%d, v63", LO + 2 * i + 1, LL + w)
    for i in range(6):
        a("v_cvt_pk_bf16_f32 v%d, v%d, v%d", 40 + i, LO + 2 * i, LO + 2 * i + 1)
    a("s_mul_i32 s47, s46, 1280")
    a("buffer_store_dwordx4 v[40:43], v30, %s, s47 offen", sr(SA + 4, 4))
    a("s_and_b64 exec, exec, vcc")
    a("buffer_store_dwordx2 v[44:45], v30, %s, s47 offen offset:16", sr(SA + 4, 4))
    a.label("%s_done" % name)
    instr_end(a, 5)
    a.label("%s_done2" % name)
    a("s_endpgm")
    for (lr, lb, qt, cur, nxt) in rare:
        a.label(lr)
        a("s_nop 15")
        a("s_nop 7")
        a("v_mov_b32 v%d, v%d", vT0, vMX + qt)
        a("v_mov_b32 v%d, v%d", vT1, vMX + qt)
        a("s_nop 1")
        a("v_permlane32_swap_b32 v%d, v%d", vT0, vT1)
        a("v_max3_f32 v%d, v%d, v%d, 0", vT0, vT0, vT1)
        a("v_exp_f32 v%d, -v%d", vT1, vT0)
        for i in range(16):
            a("v_sub_f32 v%d, v%d, v%d", ss(qt, cur) + i, ss(qt, cur) + i, vT0)
        for i in range(16):
            a("v_sub_f32 v%d, v%d, v%d", nm(qt) + i, nm(qt) + i, vT0)
        for i in range(16):
            a("v_mul_f32 v%d, v%d, v%d", oo(qt) + i, oo(qt) + i, vT1)
        a("s_nop 1")
        a("s_branch %s", lb)
    return name, VEND, 3 * STG + 66560 + 64, 512
```

```python
from common import *

class GemmCfg:
    def __init__(self, TM, WM, WN, ldw):
        self.TM, self.WM, self.WN, self.ldw = TM, WM, WN, ldw
        self.NW = WM * WN
        self.MT = TM // WM // 32
        self.NT = 128 // WN // 32
        self.NA = TM // 8 // self.NW
        self.NB = 16 // self.NW
        self.ABYTES = TM * 128
        self.STAGE = self.ABYTES + 64 * 256
        self.NST = 3
        self.KSTEPS = 10
        self.vDA = 8
        self.vDB = self.vDA + self.NA
        self.vRA = self.vDB + self.NB
        self.vRB = self.vRA + 12
        f = self.vRB + 3 * self.NT
        f = (f + 3) // 4 * 4
        self.vFA = f
        self.vFB = self.vFA + 2 * self.MT * 4
        self.vACC = self.vFB + 2 * self.NT * 4
        self.vEND = self.vACC + self.MT * self.NT * 16
    def acc(self, mt, nt):
        return self.vACC + (mt * self.NT + nt) * 16
    def fa(self, buf, mt):
        return self.vFA + (buf * self.MT + mt) * 4
    def fb(self, buf, nt):
        return self.vFB + (buf * self.NT + nt) * 4

S_SRDA = 12
S_SRDW = 16
S_SRDO = 20
S_WAVE = 24
S_MT = 25
S_NT = 26
S_BR = 27
S_LA = 28
S_LB = 29
S_SOFF = 30
S_T0 = 31
S_T1 = 32
S_T2 = 33
S_WMROW = 34
S_WNCOL = 35
S_KK = 42

def gemm_setup_lane_regs(a, c):
    a.comment("wave id, lane id")
    a("v_lshrrev_b32 v1, 6, v0")
    a("v_and_b32 v2, 63, v0")
    a("s_nop 0")
    a("v_readfirstlane_b32 s%d, v1", S_WAVE)
    a("s_nop 3")
    a("s_and_b32 s%d, s%d, %d", S_T0, S_WAVE, c.WM - 1)
    a("s_mul_i32 s%d, s%d, %d", S_WMROW, S_T0, c.MT * 32)
    a("s_lshr_b32 s%d, s%d, %d", S_T0, S_WAVE, {1: 0, 2: 1, 4: 2}[c.WM])
    a("s_mul_i32 s%d, s%d, %d", S_WNCOL, S_T0, c.NT * 32)
    a("s_mul_i32 s%d, s%d, %d", S_LA, S_WAVE, c.NA * 1024)
    a("s_mul_i32 s%d, s%d, %d", S_LB, S_WAVE, c.NB * 1024)
    a("s_add_u32 s%d, s%d, %d", S_LB, S_LB, c.ABYTES)
    a("v_lshrrev_b32 v3, 3, v2")
    a("s_mul_i32 s%d, s%d, %d", S_T0, S_WAVE, c.NA * 8)
    a("v_add_u32 v3, s%d, v3", S_T0)
    a("v_and_b32 v4, 7, v2")
    a("s_mov_b32 s%d, 1280", S_T1)
    for j in range(c.NA):
        a("v_add_u32 v5, %d, v3", 8 * j)
        a("v_bfe_u32 v6, v5, 1, 3")
        a("v_xor_b32 v6, v6, v4")
        a("v_lshlrev_b32 v6, 4, v6")
        a("v_mad_u32_u24 v%d, v5, s%d, v6", c.vDA + j, S_T1)
    a("v_lshrrev_b32 v3, 4, v2")
    a("v_lshlrev_b32 v4, 2, v3")
    a("v_and_b32 v5, 15, v2")
    a("v_xor_b32 v4, v4, v5")
    a("v_lshlrev_b32 v4, 4, v4")
    a("s_mul_i32 s%d, s%d, %d", S_T0, S_WAVE, c.NB * 4)
    a("v_add_u32 v3, s%d, v3", S_T0)
    a("s_mov_b32 s%d, %d", S_T1, c.ldw)
    for j in range(c.NB):
        a("v_add_u32 v5, %d, v3", 4 * j)
        a("v_mad_u32_u24 v%d, v5, s%d, v4", c.vDB + j, S_T1)
    a("v_and_b32 v3, 31, v2")
    a("v_add_u32 v3, s%d, v3", S_WMROW)
    a("v_lshrrev_b32 v4, 5, v2")
    a("v_bfe_u32 v5, v3, 1, 3")
    a("v_lshlrev_b32 v3, 7, v3")
    for ks in range(4):
        a("v_add_u32 v6, %d, v4", 2 * ks)
        a("v_xor_b32 v6, v6, v5")
        a("v_lshl_add_u32 v%d, v6, 4, v3", c.vRA + ks)
        for st in (1, 2):
            a("v_add_u32 v%d, %d, v%d", c.vRA + 4 * st + ks, st * c.STAGE, c.vRA + ks)
    a("v_bfe_u32 v3, v2, 2, 2")
    a("v_and_b32 v4, 3, v2")
    a("v_bfe_u32 v5, v2, 4, 1")
    a("v_lshrrev_b32 v6, 5, v2")
    a("v_lshl_add_u32 v6, v6, 3, v3")
    a("v_lshlrev_b32 v6, 8, v6")
    a("v_and_b32 v7, 1, v4")
    a("v_lshl_add_u32 v6, v7, 3, v6")
    a("v_add_u32 v6, %d, v6", c.ABYTES)
    a("v_lshrrev_b32 v4, 1, v4")
    a("v_lshl_add_u32 v4, v5, 1, v4")
    a("s_lshr_b32 s%d, s%d, 3", S_T0, S_WNCOL)
    a("v_add_u32 v4, s%d, v4", S_T0)
    a("v_lshlrev_b32 v3, 2, v3")
    for nt in range(c.NT):
        a("v_add_u32 v5, %d, v4", 4 * nt)
        a("v_xor_b32 v5, v5, v3")
        a("v_lshl_add_u32 v%d, v5, 4, v6", c.vRB + nt)
        for st in (1, 2):
            a("v_add_u32 v%d, %d, v%d", c.vRB + c.NT * st + nt, st * c.STAGE, c.vRB + nt)

import os
EXP = os.environ.get("EXP", "")
MARKSTEP = int(os.environ.get("MARKSTEP", "0"))
def gemm_issue_dma(a, c, kstep):
    st = kstep % c.NST
    if "nodma" in EXP and kstep > 2:
        return
    a("s_lshl_b32 s%d, s%d, 7", S_SOFF, S_KK)
    for j in range(c.NA):
        a("s_add_u32 m0, s%d, %d", S_LA, st * c.STAGE + j * 1024)
        a("s_nop 0")
        a("buffer_load_dwordx4 v%d, %s, s%d offen lds", c.vDA + j, sr(S_SRDA, 4), S_SOFF)
    a("s_mul_i32 s%d, s%d, %d", S_SOFF, S_KK, 64 * c.ldw)
    for j in range(c.NB):
        a("s_add_u32 m0, s%d, %d", S_LB, st * c.STAGE + j * 1024)
        a("s_nop 0")
        a("buffer_load_dwordx4 v%d, %s, s%d offen lds", c.vDB + j, sr(S_SRDW, 4), S_SOFF)
    a("s_add_u32 s%d, s%d, 1", S_KK, S_KK)
    a("s_cmp_eq_u32 s%d, 10", S_KK)
    a("s_cselect_b32 s%d, 0, s%d", S_KK, S_KK)

def gemm_frag_reads(a, c, st, ks, buf):
    for mt in range(c.MT):
        a("ds_read_b128 %s, v%d offset:%d", vr(c.fa(buf, mt), 4), c.vRA + 4 * st + ks, mt * 4096)
    for nt in range(c.NT):
        for j in range(2):
            a("ds_read_b64_tr_b16 %s, v%d offset:%d", vr(c.fb(buf, nt) + 2 * j, 2), c.vRB + c.NT * st + nt, (16 * ks + 4 * j) * 256)

def gemm_mainloop(a, c, orient, touch=None):
    nread = c.MT + 2 * c.NT
    ndma = c.NA + c.NB
    for r in range(c.MT * c.NT * 16):
        a("v_mov_b32 v%d, 0", c.vACC + r)
    gemm_issue_dma(a, c, 0)
    gemm_issue_dma(a, c, 1)
    ntouch = 0
    if touch is not None and "touch" in EXP:
        ntouch = touch(a)
    for i in range(c.KSTEPS):
        st = i % c.NST
        a.comment("---- k-step %d" % i)
        a("s_waitcnt vmcnt(%d)", (ndma + (ntouch if i < 2 else 0)) if i + 1 < c.KSTEPS else 0)
        a("s_barrier")
        if i == MARKSTEP:
            instr_mark(a, 0)
        gemm_frag_reads(a, c, st, 0, 0)
        if i + 2 < c.KSTEPS:
            gemm_issue_dma(a, c, i + 2)
        for ks in range(4):
            buf = ks & 1
            if ks < 3:
                gemm_frag_reads(a, c, st, ks + 1, buf ^ 1)
                a("s_waitcnt lgkmcnt(%d)", nread)
            else:
                a("s_waitcnt lgkmcnt(0)")
            for mt in range(c.MT):
                for nt in range(c.NT):
                    x = vr(c.fa(buf, mt), 4)
                    w = vr(c.fb(buf, nt), 4)
                    d = vr(c.acc(mt, nt), 16)
                    if "nomfma" in EXP:
                        continue
                    if orient == 'NT':
                        a("v_mfma_f32_32x32x16_bf16 %s, %s, %s, %s", d, w, x, d)
                    else:
                        a("v_mfma_f32_32x32x16_bf16 %s, %s, %s, %s", d, x, w, d)
    a("s_nop 15")
    a("s_nop 15")
    instr_mark(a, 1)

def div20(a, vq, vrem, vn, stmp):
    a("v_mul_u32_u24 v%d, s%d, v%d", vq, stmp, vn)
    a("v_lshrrev_b32 v%d, 16, v%d", vq, vq)
    a("v_mul_u32_u24 v%d, 20, v%d", vrem, vq)
    a("v_sub_u32 v%d, v%d, v%d", vrem, vn, vrem)

def gen_qkv(a):
    c = GemmCfg(256, 4, 2, 3840)
    name = "qkv_kernel"
    kernel_header(a, name)
    a("s_cmp_ge_u32 s2, 256")
    a("s_cbranch_scc1 %s_done2", name)
    a("s_and_b32 s%d, s2, 7", S_T0)
    a("s_lshr_b32 s%d, s2, 3", S_T1)
    a("s_and_b32 s%d, s%d, 1", S_BR, S_T0)
    a("s_bfe_u32 s%d, s%d, 0x10001", S_MT, S_T0)
    a("s_lshl_b32 s%d, s%d, 2", S_MT, S_MT)
    a("s_and_b32 s%d, s%d, 3", S_T2, S_T1)
    a("s_add_u32 s%d, s%d, s%d", S_MT, S_MT, S_T2)
    a("s_lshr_b32 s%d, s%d, 2", S_NT, S_T0)
    a("s_lshl_b32 s%d, s%d, 3", S_NT, S_NT)
    a("s_lshr_b32 s%d, s%d, 2", S_T2, S_T1)
    a("s_add_u32 s%d, s%d, s%d", S_NT, S_NT, S_T2)
    a("s_cmp_ge_u32 s%d, 15", S_NT)
    a("s_cbranch_scc1 %s_done2", name)
    a("s_mul_i32 s%d, s%d, 3", S_KK, S_T1)
    a("s_mul_i32 s%d, s%d, 6554", S_T2, S_KK)
    a("s_lshr_b32 s%d, s%d, 16", S_T2, S_T2)
    a("s_mul_i32 s%d, s%d, 10", S_T2, S_T2)
    a("s_sub_u32 s%d, s%d, s%d", S_KK, S_KK, S_T2)
    a("s_mov_b32 s%d, 0", S_KK)
    instr_begin(a)
    a("s_load_dwordx4 s[4:7], s[0:1], 0")
    a("s_load_dwordx4 s[8:11], s[0:1], 24")
    a("s_load_dwordx2 s[36:37], s[0:1], 64")
    a("s_waitcnt lgkmcnt(0)")
    a("s_cmp_eq_u32 s%d, 0", S_BR)
    a("s_cselect_b64 s[4:5], s[4:5], s[8:9]")
    a("s_cselect_b64 s[6:7], s[6:7], s[10:11]")
    a("s_mul_i32 s%d, s%d, %d", S_T0, S_MT, 256 * 1280)
    a("s_add_u32 s%d, s4, s%d", S_SRDA, S_T0)
    a("s_addc_u32 s%d, s5, 0", S_SRDA + 1)
    a("s_mov_b32 s%d, %d", S_SRDA + 2, 256 * 1280)
    a("s_mov_b32 s%d, 0x00020000", S_SRDA + 3)
    a("s_lshl_b32 s%d, s%d, 8", S_T0, S_NT)
    a("s_add_u32 s%d, s6, s%d", S_SRDW, S_T0)
    a("s_addc_u32 s%d, s7, 0", S_SRDW + 1)
    a("s_sub_u32 s%d, %d, s%d", S_SRDW + 2, 640 * 3840, S_T0)
    a("s_mov_b32 s%d, 0x00020000", S_SRDW + 3)
    a("s_mov_b32 s%d, s36", S_SRDO)
    a("s_mov_b32 s%d, s37", S_SRDO + 1)
    a("s_mov_b32 s%d, %d", S_SRDO + 2, 32 << 20)
    a("s_mov_b32 s%d, 0x00020000", S_SRDO + 3)
    gemm_setup_lane_regs(a, c)
    a("s_cmp_eq_u32 s%d, 1", S_BR)
    a("s_cselect_b32 s%d, s%d, 0", S_T0, S_NT)
    a("s_cmp_ge_u32 s%d, 10", S_T0)
    a("s_cbranch_scc1 %s_vtile", name)
    def touch(a):
        a.comment("cache warm-up: touch one dword per 128-B line of later k-slices (shared out over the workgroups)")
        a("v_and_b32 v2, 63, v0")
        a("s_and_b32 s%d, s%d, 3", S_T0, S_MT)
        a("s_lshl_b32 s%d, s%d, 8", S_T0, S_T0)
        a("s_lshl_b32 s%d, s%d, 5", S_T1, S_WAVE)
        a("s_add_u32 s%d, s%d, s%d", S_T0, S_T0, S_T1)
        a("v_and_b32 v3, 31, v2")
        a("v_add_u32 v3, s%d, v3", S_T0)
        a("v_lshrrev_b32 v4, 1, v3")
        a("v_add_u32 v4, 128, v4")
        a("v_and_b32 v3, 1, v3")
        a("v_lshlrev_b32 v3, 7, v3")
        a("s_mov_b32 s%d, 3840", S_T1)
        a("v_mad_u32_u24 v3, v4, s%d, v3", S_T1)
        a("buffer_load_dword v1, v3, %s, 0 offen", sr(S_SRDW, 4))
        a("s_and_b32 s%d, s%d, 7", S_T0, S_NT)
        a("s_lshl_b32 s%d, s%d, 5", S_T0, S_T0)
        a("s_lshl_b32 s%d, s%d, 2", S_T1, S_WAVE)
        a("s_add_u32 s%d, s%d, s%d", S_T0, S_T0, S_T1)
        a("v_lshrrev_b32 v4, 4, v2")
        a("v_add_u32 v4, s%d, v4", S_T0)
        a("v_and_b32 v3, 7, v2")
        a("v_lshlrev_b32 v3, 7, v3")
        a("v_add_u32 v3, 256, v3")
        a("s_mov_b32 s%d, 1280", S_T1)
        a("v_mad_u32_u24 v3, v4, s%d, v3", S_T1)
        a("buffer_load_dword v1, v3, %s, 0 offen", sr(S_SRDA, 4))
        return 2
    gemm_mainloop(a, c, 'NT', touch)
    a("v_and_b32 v2, 63, v0")
    a("v_and_b32 v3, 31, v2")
    a("v_lshrrev_b32 v4, 5, v2")
    a("v_lshlrev_b32 v4, 2, v4")
    a("s_lshl_b32 s%d, s%d, 7", S_T0, S_NT)
    a("s_add_u32 s%d, s%d, s%d", S_T0, S_T0, S_WNCOL)
    a("v_add_u32 v4, s%d, v4", S_T0)
    a("s_lshl_b32 s%d, s%d, 8", S_T1, S_MT)
    a("s_add_u32 s%d, s%d, s%d", S_T1, S_T1, S_WMROW)
    a("v_add_u32 v5, s%d, v3", S_T1)
    a("s_mov_b32 s%d, 3277", S_T2)
    a("s_cmp_eq_u32 s%d, 1", S_BR)
    a("s_cselect_b32 s38, s%d, 0", S_NT)
    a("s_cmp_ge_u32 s38, 5")
    a("s_cbranch_scc1 %s_epiK", name)
    import struct, math
    sc = (20.0 ** -0.5) * math.log2(math.e)
    SC = struct.unpack('<I', struct.pack('<f', sc))[0]
    a("s_cmp_eq_u32 s%d, 1", S_BR)
    a("s_cselect_b32 s38, 0x%08x, 1.0", SC)
    a("s_mov_b32 s39, 3840")
    a("s_cselect_b32 s39, 1280, s39")
    a("s_mov_b32 s40, %d", WS_QA)
    a("s_cselect_b32 s40, %d, s40", WS_QB)
    a("s_barrier")
    CST = 272
    a("v_add_u32 v6, s%d, v3", S_WMROW)
    a("v_mul_u32_u24 v6, %d, v6", CST)
    a("v_lshrrev_b32 v7, 5, v2")
    a("v_lshlrev_b32 v7, 3, v7")
    a("s_lshl_b32 s41, s%d, 1", S_WNCOL)
    a("v_add3_u32 v6, v6, v7, s41")
    for mt in range(c.MT):
        for nt in range(c.NT):
            for j in range(4):
                r = c.acc(mt, nt) + 4 * j
                for q in range(4):
                    a("v_mul_f32 v%d, s38, v%d", r + q, r + q)
                a("v_cvt_pk_bf16_f32 v%d, v%d, v%d", r, r, r + 1)
                a("v_cvt_pk_bf16_f32 v%d, v%d, v%d", r + 1, r + 2, r + 3)
                a("ds_write_b64 v6, %s offset:%d", vr(r, 2), mt * 32 * CST + (nt * 32 + 8 * j) * 2)
    a("s_waitcnt lgkmcnt(0)")
    a("s_barrier")
    a("s_cmp_eq_u32 s%d, 1", S_BR)
    a("s_cbranch_scc1 %s_epiQ2", name)
    a("v_lshrrev_b32 v6, 4, v2")
    a("s_lshl_b32 s41, s%d, 5", S_WAVE)
    a("v_add_u32 v6, s41, v6")
    a("v_and_b32 v7, 15, v2")
    a("v_lshlrev_b32 v7, 4, v7")
    a("v_mul_u32_u24 v8, %d, v6", CST)
    a("v_add_u32 v8, v8, v7")
    a("s_lshl_b32 s41, s%d, 8", S_MT)
    a("v_add_u32 v6, s41, v6")
    a("v_mul_lo_u32 v6, v6, s39")
    a("s_lshl_b32 s41, s%d, 8", S_NT)
    a("s_add_u32 s41, s41, s40")
    a("v_add3_u32 v6, v6, v7, s41")
    a("s_lshl_b32 s41, s39, 2")
    D0 = c.vACC
    for it in range(8):
        a("ds_read_b128 %s, v8 offset:%d", vr(D0 + 4 * it, 4), it * 4 * CST)
    for it in range(8):
        a("s_waitcnt lgkmcnt(%d)", 7 - it)
        a("buffer_store_dwordx4 %s, v6, %s, 0 offen", vr(D0 + 4 * it, 4), sr(S_SRDO, 4))
        if it < 7:
            a("v_add_u32 v6, s41, v6")
    a("s_branch %s_done", name)
    a.label("%s_epiQ2" % name)
    a("v_and_b32 v7, 31, v2")
    a("v_lshlrev_b32 v1, 2, v7")
    a("s_lshl_b32 s41, s%d, 7", S_NT)
    a("v_add_u32 v1, s41, v1")
    div20(a, 8, 9, 1, S_T2)
    a("s_mov_b32 s41, 81920")
    a("v_mul_lo_u32 v8, v8, s41")
    a("v_lshl_add_u32 v8, v9, 1, v8")
    a("v_lshrrev_b32 v6, 5, v2")
    a("s_lshl_b32 s41, s%d, 5", S_WAVE)
    a("v_add_u32 v6, s41, v6")
    a("v_mul_u32_u24 v9, %d, v6", CST)
    a("v_lshl_add_u32 v9, v7, 3, v9")
    a("s_lshl_b32 s41, s%d, 8", S_MT)
    a("v_add_u32 v6, s41, v6")
    a("v_mad_u32_u24 v8, v6, 40, v8")
    a("v_add_u32 v8, %d, v8", WS_QB)
    for it in range(16):
        a("ds_read_b64 %s, v9 offset:%d", vr(c.vACC + 2 * it, 2), it * 2 * CST)
    for it in range(16):
        a("s_waitcnt lgkmcnt(%d)", 15 - it)
        a("buffer_store_dwordx2 %s, v8, %s, 0 offen offset:%d", vr(c.vACC + 2 * it, 2), sr(S_SRDO, 4), it * 80)
    a("s_branch %s_done", name)
    a.label("%s_epiK" % name)
    a("v_subrev_u32 v4, 640, v4")
    a("s_lshr_b32 s%d, s%d, 5", S_T1, S_T1)
    a("s_mul_i32 s%d, s%d, 3072", S_T1, S_T1)
    a("s_add_u32 s%d, s%d, %d", S_T1, S_T1, WS_KV)
    a("v_lshlrev_b32 v5, 4, v3")
    a("v_add_u32 v5, s%d, v5", S_T1)
    a("s_mov_b32 s%d, %d", S_T0, 64 * 3072)
    a("v_mov_b32 v%d, 0" % (c.vFA)); a("v_mov_b32 v%d, 0" % (c.vFA + 1))
    for nt in range(c.NT):
        for j in range(4):
            a("v_add_u32 v1, %d, v4", nt * 32 + 8 * j)
            div20(a, 6, 7, 1, S_T2)
            a("v_mul_u32_u24 v6, s%d, v6", S_T0)
            a("v_lshrrev_b32 v1, 3, v7")
            a("v_lshl_add_u32 v6, v1, 9, v6")
            a("v_and_b32 v1, 7, v7")
            a("v_lshl_add_u32 v6, v1, 1, v6")
            a("v_add_u32 v6, v6, v5")
            a("v_cmp_eq_u32 vcc, 16, v7")
            for mt in range(c.MT):
                r = c.acc(mt, nt) + 4 * j
                a("v_cvt_pk_bf16_f32 v%d, v%d, v%d", r, r, r + 1)
                a("v_cvt_pk_bf16_f32 v%d, v%d, v%d", r + 1, r + 2, r + 3)
                a("buffer_store_dwordx2 %s, v6, %s, 0 offen offset:%d", vr(r, 2), sr(S_SRDO, 4), mt * 3072)
            a("s_and_saveexec_b64 s[38:39], vcc")
            a("s_cbranch_execz %s_kz_%d_%d", name, nt, j)
            for mt in range(c.MT):
                a("buffer_store_dwordx2 %s, v6, %s, 0 offen offset:%d", vr(c.vFA, 2), sr(S_SRDO, 4), mt * 3072 + 8)
            a.label("%s_kz_%d_%d" % (name, nt, j))
            a("s_mov_b64 exec, s[38:39]")
    a("s_branch %s_done", name)
    a.label("%s_vtile" % name)
    gemm_mainloop(a, c, 'TN', touch)
    a("v_and_b32 v2, 63, v0")
    a("v_and_b32 v3, 31, v2")
    a("v_lshrrev_b32 v4, 5, v2")
    a("s_lshl_b32 s%d, s%d, 7", S_T0, S_NT)
    a("s_add_u32 s%d, s%d, s%d", S_T0, S_T0, S_WNCOL)
    a("s_sub_u32 s%d, s%d, 1280", S_T0, S_T0)
    a("v_add_u32 v3, s%d, v3", S_T0)
    a("s_lshl_b32 s%d, s%d, 8", S_T1, S_MT)
    a("s_add_u32 s%d, s%d, s%d", S_T1, S_T1, S_WMROW)
    a("s_lshr_b32 s%d, s%d, 5", S_T1, S_T1)
    a("s_mul_i32 s%d, s%d, 3072", S_T1, S_T1)
    a("s_add_u32 s%d, s%d, %d", S_T1, S_T1, WS_KV + 1536)
    a("v_mul_u32_u24 v5, 384, v4")
    a("v_add_u32 v5, s%d, v5", S_T1)
    a("s_mov_b32 s%d, 3277", S_T2)
    a("s_mov_b32 s%d, %d", S_T0, 64 * 3072)
    for t in range(4):
        a("v_mov_b32 v%d, 0x3f803f80", c.vFA + t)
    for nt in range(c.NT):
        a("v_add_u32 v1, %d, v3", nt * 32)
        div20(a, 6, 7, 1, S_T2)
        a("v_mul_u32_u24 v6, s%d, v6", S_T0)
        a("v_lshl_add_u32 v6, v7, 4, v6")
        a("v_add_u32 v6, v6, v5")
        a("v_cmp_eq_u32 vcc, 19, v7")
        for mt in range(c.MT):
            r = c.acc(mt, nt)
            for k in range(8):
                a("v_cvt_pk_bf16_f32 v%d, v%d, v%d", r + k, r + 2 * k, r + 2 * k + 1)
            for step in range(2):
                a("buffer_store_dwordx4 %s, v6, %s, 0 offen offset:%d", vr(r + 4 * step, 4), sr(S_SRDO, 4), mt * 3072 + step * 768)
        a("s_and_saveexec_b64 s[38:39], vcc")
        a("s_cbranch_execz %s_vo_%d", name, nt)
        for mt in range(c.MT):
            for step in range(2):
                a("buffer_store_dwordx4 %s, v6, %s, 0 offen offset:%d", vr(c.vFA, 4), sr(S_SRDO, 4), mt * 3072 + step * 768 + 16)
        a.label("%s_vo_%d" % (name, nt))
        a("s_mov_b64 exec, s[38:39]")
    a.label("%s_done" % name)
    instr_end(a, 5)
    a.label("%s_done2" % name)
    a("s_endpgm")
    return name, c.vEND, c.STAGE * c.NST, 512

def gen_oproj(a):
    c = GemmCfg(64, 2, 2, 1280)
    name = "oproj_kernel"
    kernel_header(a, name)
    a("s_cmp_ge_u32 s2, 320")
    a("s_cbranch_scc1 %s_done2", name)
    instr_begin(a)
    a("s_load_dwordx2 s[4:5], s[0:1], 16")
    a("s_load_dwordx2 s[6:7], s[0:1], 40")
    a("s_load_dwordx2 s[8:9], s[0:1], 48")
    a("s_load_dwordx2 s[36:37], s[0:1], 64")
    a("s_and_b32 s%d, s2, 7", S_T0)
    a("s_lshr_b32 s%d, s2, 3", S_T1)
    a("s_and_b32 s%d, s%d, 1", S_BR, S_T0)
    a("s_lshr_b32 s%d, s%d, 1", S_MT, S_T0)
    a("s_lshl_b32 s%d, s%d, 3", S_MT, S_MT)
    a("s_mul_i32 s%d, s%d, 52429", S_T2, S_T1)
    a("s_lshr_b32 s%d, s%d, 18", S_T2, S_T2)
    a("s_add_u32 s%d, s%d, s%d", S_MT, S_MT, S_T2)
    a("s_mul_i32 s%d, s%d, 5", S_T2, S_T2)
    a("s_sub_u32 s%d, s%d, s%d", S_NT, S_T1, S_T2)
    a("s_waitcnt lgkmcnt(0)")
    a("s_cmp_eq_u32 s%d, 0", S_BR)
    a("s_cselect_b64 s[6:7], s[4:5], s[6:7]")
    a("s_mov_b32 s%d, %d", S_T1, WS_OB)
    a("s_cselect_b32 s%d, %d, s%d", S_T1, WS_OA, S_T1)
    a("s_mul_i32 s%d, s%d, %d", S_T0, S_MT, 64 * 1280)
    a("s_add_u32 s%d, s%d, s%d", S_T0, S_T0, S_T1)
    a("s_add_u32 s%d, s36, s%d", S_SRDA, S_T0)
    a("s_addc_u32 s%d, s37, 0", S_SRDA + 1)
    a("s_mov_b32 s%d, %d", S_SRDA + 2, 64 * 1280)
    a("s_mov_b32 s%d, 0x00020000", S_SRDA + 3)
    a("s_lshl_b32 s%d, s%d, 8", S_T0, S_NT)
    a("s_add_u32 s%d, s6, s%d", S_SRDW, S_T0)
    a("s_addc_u32 s%d, s7, 0", S_SRDW + 1)
    a("s_sub_u32 s%d, %d, s%d", S_SRDW + 2, 640 * 1280, S_T0)
    a("s_mov_b32 s%d, 0x00020000", S_SRDW + 3)
    a("s_mov_b32 s%d, s8", S_SRDO)
    a("s_mov_b32 s%d, s9", S_SRDO + 1)
    a("s_mov_b32 s%d, %d", S_SRDO + 2, 2048 * 2560)
    a("s_mov_b32 s%d, 0x00020000", S_SRDO + 3)
    gemm_setup_lane_regs(a, c)
    gemm_mainloop(a, c, 'NT')
    a("v_and_b32 v2, 63, v0")
    a("v_and_b32 v3, 31, v2")
    a("v_lshrrev_b32 v4, 5, v2")
    a("v_lshlrev_b32 v4, 2, v4")
    a("s_lshl_b32 s%d, s%d, 7", S_T0, S_NT)
    a("s_add_u32 s%d, s%d, s%d", S_T0, S_T0, S_WNCOL)
    a("s_mul_i32 s%d, s%d, 640", S_T2, S_BR)
    a("s_add_u32 s%d, s%d, s%d", S_T0, S_T0, S_T2)
    a("v_add_u32 v4, s%d, v4", S_T0)
    a("s_lshl_b32 s%d, s%d, 6", S_T1, S_MT)
    a("s_add_u32 s%d, s%d, s%d", S_T1, S_T1, S_WMROW)
    a("v_add_u32 v5, s%d, v3", S_T1)
    a("s_mov_b32 s%d, 2560", S_T2)
    a("v_mul_u32_u24 v6, s%d, v5", S_T2)
    a("v_lshl_add_u32 v6, v4, 1, v6")
    for nt in range(c.NT):
        for j in range(4):
            r = c.acc(0, nt) + 4 * j
            a("v_cvt_pk_bf16_f32 v%d, v%d, v%d", r, r, r + 1)
            a("v_cvt_pk_bf16_f32 v%d, v%d, v%d", r + 1, r + 2, r + 3)
            a("buffer_store_dwordx2 %s, v6, %s, 0 offen offset:%d", vr(r, 2), sr(S_SRDO, 4), (nt * 32 + 8 * j) * 2)
    a.label("%s_done" % name)
    instr_end(a, 5)
    a.label("%s_done2" % name)
    a("s_endpgm")
    return name, c.vEND, c.STAGE * c.NST, 256
```
